```python
import torch

def _softmax(x, axis=-1):
    return torch.softmax(x, dim=axis)

def _gelu(x):
    return torch.nn.functional.gelu(x, approximate='tanh')

def _silu(x):
    return torch.nn.functional.silu(x)

def _sigmoid(x):
    return torch.sigmoid(x)

def _layernorm(x, axis=-1, eps=1e-05):
    m = x.mean(dim=axis, keepdim=True)
    v = x.var(dim=axis, keepdim=True, unbiased=False)
    return (x - m) / torch.sqrt(v + eps)

def _scatter_add(tgt, idx, src, axis=0):
    return tgt.clone().index_add_(axis, idx, src)

def _segment_sum(src, seg, n):
    out = torch.zeros((n,) + src.shape[1:], dtype=src.dtype)
    return out.index_add_(0, seg, src)

def _pad(x, pw):
    flat = tuple((v for pair in reversed(pw) for v in pair))
    return torch.nn.functional.pad(x, flat)
kernel_name = 'standalone__tensor_product_equiv_equiformer__graph'

def setup_inputs():

    _w = lambda a: (lambda t: t.to(torch.bfloat16) if t.is_floating_point() else t)(torch.as_tensor(a))
    N, deg, C, De = (10000, 64, 64, max(4, 1))
    E = N * deg
    src = (lambda lo, hi, *s: torch.randint(lo, hi, s))(0, N, E).to(torch.int64)
    dst = (lambda lo, hi, *s: torch.randint(lo, hi, s))(0, N, E).to(torch.int64)
    rvec = (lambda *s: torch.randn(*s, dtype=torch.bfloat16) * 0.05)(E, 3).to(float)
    rn = (torch.linalg.norm(rvec, dim=-1, keepdim=True) + 1e-06).to(float)
    rhat = (rvec / rn).to(float)
    eps = torch.zeros((3, 3, 3), dtype=float)
    eps[0, 1, 2] = eps[1, 2, 0] = eps[2, 0, 1] = 1.0
    eps[0, 2, 1] = eps[2, 1, 0] = eps[1, 0, 2] = -1.0
    return {'x': _w((lambda *s: torch.randn(*s, dtype=torch.bfloat16) * 0.4)(N, 4 * C).to(float)), 'rhat': _w(rhat), 'e_attr': _w((lambda *s: torch.randn(*s, dtype=torch.bfloat16) * 0.4)(E, De).to(float)), 'src': _w(src), 'dst': _w(dst), 'w_rad': _w((lambda *s: torch.randn(*s, dtype=torch.bfloat16) * 0.4)(De, 5 * C).to(float)), 'w_si0': _w((lambda *s: torch.randn(*s, dtype=torch.bfloat16) * 0.4)(2 * C, C).to(float)), 'w_si1': _w((lambda *s: torch.randn(*s, dtype=torch.bfloat16) * 0.05)(3 * C, C).to(float)), 'cg_eps': _w(eps)}

def reference(x, rhat, e_attr, src, dst, w_rad, w_si0, w_si1, cg_eps):
    N = x.shape[0]
    C = w_si0.shape[1]
    E = rhat.shape[0]
    x0 = x[:, :C].clone()
    x1 = x[:, C:].reshape(N, 3, C)
    R = (e_attr @ w_rad).reshape(E, 5, C)
    f0 = x0[src]
    f1 = x1[src]
    Y1 = rhat
    p00_0 = f0 * R[:, 0, :]
    p11_0 = torch.einsum('ejc,ej->ec', f1, Y1) * R[:, 1, :]
    p01_1 = torch.einsum('ec,ej->ejc', f0, Y1) * R[:, 2, :][:, None, :]
    p10_1 = f1 * R[:, 3, :][:, None, :]
    p11_1 = torch.einsum('ijk,ekc,ej->eic', cg_eps, f1, Y1) * R[:, 4, :][:, None, :]
    m0 = torch.concatenate([p00_0, p11_0], axis=-1) @ w_si0
    m1 = torch.einsum('ejp,pc->ejc', torch.concatenate([p01_1, p10_1, p11_1], axis=-1), w_si1)
    agg0 = _segment_sum(m0, dst, N)
    agg1 = _segment_sum(m1.reshape(E, 3 * C), dst, N).reshape(N, 3, C)
    gate = _sigmoid(agg0)
    out1 = agg1 * gate[:, None, :]
    return torch.concatenate([agg0, out1.reshape(N, 3 * C)], axis=-1)
```

```python
import sys

NAME = "standalone__tensor_product_equiv_equiformer__graph"

class Cfg:
    NW = 12
    TS = 0
    PF_H0 = 2
    K1_TOUCH = 2
    K1_WSTOUCH = 1
    QFAST_IT = 11
    QSLOW_IT = 4
    FORCE_SLOW = 0
    ABL = 0

NCH = 250
NB = 256
NPB = 40
CH = 2560
REC_OFF = 0
KEY_OFF = 0x9D0000
TAB_OFF = 0xA80000
WT_OFF = 0xAC0000
TS_OFF = 0xB00000
WS_BYTES = 0x1000000

class Asm:
    def __init__(self):
        self.l = []
    def __call__(self, s):
        self.l.append("    " + s)
    def label(self, s):
        self.l.append(s + ":")
    def raw(self, s):
        self.l.append(s)
    def text(self):
        return "\n".join(self.l) + "\n"

def vr(a, n):
    return "v[%d:%d]" % (a, a + n - 1)
def sr(a, n):
    return "s[%d:%d]" % (a, a + n - 1)

def wave_scan(a, v):
    for m in ("row_shr:1 row_mask:0xf", "row_shr:2 row_mask:0xf", "row_shr:4 row_mask:0xf",
              "row_shr:8 row_mask:0xf", "row_bcast:15 row_mask:0xa", "row_bcast:31 row_mask:0xc"):
        a("s_nop 1")
        a("v_add_u32_dpp v%d, v%d, v%d %s bank_mask:0xf" % (v, v, v, m))

TSB = 64
def stamp(a, cfg, idx):
    if cfg.TS:
        a("s_memrealtime %s" % sr(TSB + 2 * idx, 2))

def stamp_flush(a, cfg, kern, n, s_ws, va, vb, s_tmp):
    if not cfg.TS:
        return
    a("s_mov_b64 exec, -1")
    a("s_lshl_b32 s%d, s2, 10" % s_tmp)
    a("s_add_u32 s%d, s%d, 0x%x" % (s_tmp, s_tmp, TS_OFF + kern * 0x40000))
    a("v_lshrrev_b32 v%d, 6, v0" % va)
    a("v_lshlrev_b32 v%d, 6, v%d" % (va, va))
    a("v_add_u32 v%d, s%d, v%d" % (va, s_tmp, va))
    a("s_waitcnt lgkmcnt(0)")
    for i in range(n):
        a("v_mov_b32 v%d, s%d" % (vb, TSB + 2 * i))
        a("global_store_dword v%d, v%d, %s offset:%d" % (va, vb, sr(s_ws, 2), i * 4))

def gen_k1(a, cfg):
    L_BASE = 1024
    L_REC = 12288
    L_KEY = L_REC + CH * 16
    lds = L_KEY + CH
    a.raw(".p2align 8")
    a.raw(".globl bin_kernel")
    a.raw(".type bin_kernel,@function")
    a.label("bin_kernel")
    a("s_cmp_ge_u32 s2, %d" % NCH)
    a("s_cbranch_scc1 K1_EXTRA")
    stamp(a, cfg, 0)
    a("s_load_dwordx4 s[8:11], s[0:1], 24")
    a("s_load_dwordx4 s[4:7], s[0:1], 8")
    a("s_load_dwordx2 s[12:13], s[0:1], 88")
    a("s_load_dwordx2 s[14:15], s[0:1], 0")
    a("s_mul_i32 s16, s2, 640")
    a("v_add_u32 v1, s16, v0")
    a("v_lshlrev_b32 v2, 4, v1")
    a("v_lshlrev_b32 v3, 5, v1")
    a("v_mul_u32_u24 v4, 24, v1")
    a("v_lshlrev_b32 v5, 2, v0")
    a("v_mov_b32 v6, 0")
    a("ds_write_b32 v5, v6")
    a("v_lshrrev_b32 v30, 6, v0")
    a("v_and_b32 v31, 63, v0")
    a("s_mul_i32 s17, s2, 20480")
    a("v_lshlrev_b32 v7, 11, v30")
    a("v_lshl_add_u32 v7, v31, 7, v7")
    a("v_add_u32 v7, s17, v7")
    a("s_movk_i32 s18, 625")
    a("v_lshlrev_b32 v40, 4, v0")
    a("s_mul_i32 s20, s2, %d" % (CH * 16))
    a("v_add_u32 v57, s20, v40")
    a("s_mul_i32 s20, s2, %d" % CH)
    a("s_add_u32 s20, s20, 0x%x" % KEY_OFF)
    a("v_add_u32 v58, s20, v5")
    a("s_waitcnt lgkmcnt(0)")
    stamp(a, cfg, 1)
    a("v_mov_b32 v6, 1")
    a("global_load_dwordx4 v[8:11], v2, s[10:11]")
    a("global_load_dwordx4 v[12:15], v2, s[8:9]")
    a("global_load_dwordx4 v[16:19], v3, s[6:7]")
    a("global_load_dwordx4 v[20:23], v3, s[6:7] offset:16")
    a("global_load_dwordx4 v[24:27], v4, s[4:5]")
    a("global_load_dwordx2 v[28:29], v4, s[4:5] offset:16")
    nyoung = 5
    if cfg.K1_TOUCH == 1:
        a("s_mov_b64 exec, 0xffff")
        a("global_load_dword v7, v7, s[14:15]")
        a("s_mov_b64 exec, -1")
        nyoung += 1
    if cfg.K1_WSTOUCH:
        a("s_mov_b64 exec, 1")
        a("global_load_dword v59, v57, s[12:13]")
        a("global_load_dword v60, v58, s[12:13]")
        a("s_mov_b64 exec, -1")
        nyoung += 2
    a("s_barrier")
    a("s_waitcnt vmcnt(%d)" % nyoung)
    stamp(a, cfg, 2)
    for k in range(4):
        a("v_mul_u32_u24 v%d, 429497, v%d" % (32 + k, 8 + k))
        a("v_lshrrev_b32 v%d, 24, v%d" % (32 + k, 32 + k))
        a("v_mad_u32_u24 v41, v%d, s18, 15" % (32 + k))
        a("v_lshlrev_b32 v%d, 2, v%d" % (32 + k, 32 + k))
        a("ds_add_rtn_u32 v%d, v%d, v6" % (36 + k, 32 + k))
        a("v_lshrrev_b32 v41, 4, v41")
        a("v_sub_u32 v%d, v%d, v41" % (8 + k, 8 + k))
    a("v_lshlrev_b32 v43, 4, v31")
    a("v_lshlrev_b32 v41, 10, v30")
    a("s_waitcnt lgkmcnt(0)")
    a("s_barrier")
    stamp(a, cfg, 3)
    a("ds_read_b128 v[44:47], v43")
    a("v_add_u32 v42, v43, v41")
    for k in range(4):
        a("v_add_u32 v%d, v%d, v41" % (32 + k, 32 + k))
    a("s_waitcnt lgkmcnt(0)")
    a("v_add_u32 v49, v44, v45")
    a("v_add_u32 v50, v49, v46")
    a("v_add_u32 v51, v50, v47")
    a("v_mov_b32 v52, v51")
    wave_scan(a, 52)
    a("v_sub_u32 v52, v52, v51")
    a("v_add_u32 v53, v52, v44")
    a("v_add_u32 v54, v52, v49")
    a("v_add_u32 v55, v52, v50")
    a("ds_write_b128 v42, v[52:55] offset:%d" % L_BASE)
    a("s_waitcnt lgkmcnt(0)")
    for k in range(4):
        a("ds_read_b32 v%d, v%d offset:%d" % (32 + k, 32 + k, L_BASE))
    a("v_readfirstlane_b32 s19, v30")
    a("s_cmp_lg_u32 s19, 0")
    a("s_cbranch_scc1 K1_NOTAB")
    a("s_lshl_b32 s20, s2, 2")
    a("s_add_u32 s20, s20, 0x%x" % TAB_OFF)
    a("v_lshlrev_b32 v56, 12, v31")
    a("v_add_u32 v56, s20, v56")
    for k in range(4):
        a("v_lshl_or_b32 v%d, v%d, 16, v%d" % (52 + k, 44 + k, 52 + k))
        a("global_store_dword v56, v%d, s[12:13] offset:%d" % (52 + k, k * 1024))
    a("s_waitcnt vmcnt(%d)" % (4 + nyoung - 5))
    a("s_branch K1_TABDONE")
    a.label("K1_NOTAB")
    a("s_waitcnt vmcnt(%d)" % (nyoung - 5))
    a.label("K1_TABDONE")
    stamp(a, cfg, 4)
    if cfg.K1_TOUCH == 2:
        a("s_mov_b64 exec, 0xffff")
        a("global_load_dword v7, v7, s[14:15]")
        a("s_mov_b64 exec, -1")
    a("s_mov_b32 s21, 0x05040100")
    a("s_mov_b32 s22, 0x07060100")
    a("v_mov_b32 v44, v16")
    a("v_mov_b32 v45, v17")
    a("v_perm_b32 v46, v24, v12, s21")
    a("v_alignbit_b32 v47, v25, v24, 16")
    a("v_mov_b32 v48, v18")
    a("v_mov_b32 v49, v19")
    a("v_perm_b32 v50, v25, v13, s22")
    a("v_mov_b32 v51, v26")
    a("v_mov_b32 v16, v20")
    a("v_mov_b32 v17, v21")
    a("v_perm_b32 v18, v27, v14, s21")
    a("v_alignbit_b32 v19, v28, v27, 16")
    a("v_perm_b32 v24, v28, v15, s22")
    a("v_mov_b32 v25, v29")
    recs = [44, 48, 16, 22]
    a("s_waitcnt lgkmcnt(0)")
    for k in range(4):
        a("v_add_u32 v%d, v%d, v%d" % (32 + k, 32 + k, 36 + k))
        a("v_lshlrev_b32 v%d, 4, v%d" % (36 + k, 32 + k))
        a("ds_write_b128 v%d, %s offset:%d" % (36 + k, vr(recs[k], 4), L_REC))
        a("ds_write_b8 v%d, v%d offset:%d" % (32 + k, 8 + k, L_KEY))
    a("v_add_u32 v43, 0x5000, v57")
    a("s_waitcnt lgkmcnt(0)")
    a("s_barrier")
    stamp(a, cfg, 5)
    for k in range(4):
        a("ds_read_b128 %s, v40 offset:%d" % (vr(8 + 4 * k, 4), L_REC + k * 10240))
    a("ds_read_b32 v24, v5 offset:%d" % L_KEY)
    a("v_add_u32 v44, 0x2800, v57")
    a("v_add_u32 v45, 0x7800, v57")
    for k, va in enumerate([57, 44, 43, 45]):
        a("s_waitcnt lgkmcnt(%d)" % (4 - k))
        a("global_store_dwordx4 v%d, %s, s[12:13]" % (va, vr(8 + 4 * k, 4)))
    a("s_waitcnt lgkmcnt(0)")
    a("global_store_dword v58, v24, s[12:13]")
    if cfg.TS:
        stamp(a, cfg, 6)
        a("s_waitcnt vmcnt(0)")
        stamp(a, cfg, 7)
        stamp_flush(a, cfg, 0, 8, 12, 61, 62, 30)
    a("s_endpgm")
    a.label("K1_EXTRA")
    a("s_cmp_ge_u32 s2, %d" % (NCH + 5))
    a("s_cbranch_scc1 K1_END")
    a("s_load_dwordx4 s[4:7], s[0:1], 48")
    a("s_load_dwordx2 s[12:13], s[0:1], 88")
    a("s_sub_u32 s16, s2, %d" % NCH)
    a("v_cmp_gt_u32 vcc, 512, v0")
    a("v_lshrrev_b32 v1, 3, v0")
    a("v_and_b32 v2, 7, v0")
    a("v_lshlrev_b32 v3, 10, v2")
    a("v_lshl_add_u32 v3, v1, 1, v3")
    a("v_lshlrev_b32 v4, 4, v0")
    a("s_lshl_b32 s17, s16, 13")
    a("s_add_u32 s18, s17, 0x%x" % WT_OFF)
    a("v_add_u32 v4, s18, v4")
    a("s_waitcnt lgkmcnt(0)")
    a("s_cmp_ge_u32 s16, 2")
    a("s_cselect_b32 s4, s6, s4")
    a("s_cselect_b32 s5, s7, s5")
    a("s_cselect_b32 s19, 0x4000, 0")
    a("s_sub_u32 s17, s17, s19")
    a("v_add_u32 v3, s17, v3")
    a("s_and_saveexec_b64 s[20:21], vcc")
    a("s_cbranch_execz K1_END")
    for i in range(4):
        a("global_load_ushort v%d, v3, s[4:5] offset:%d" % (8 + i, i * 256))
        a("global_load_ushort v%d, v3, s[4:5] offset:%d" % (12 + i, i * 256 + 128))
    a("s_waitcnt vmcnt(0)")
    for i in range(4):
        a("v_lshl_or_b32 v%d, v%d, 16, v%d" % (8 + i, 12 + i, 8 + i))
    a("global_store_dwordx4 v4, v[8:11], s[12:13]")
    a.label("K1_END")
    a("s_endpgm")
    return lds

def path6(g, l):
    if g == 0 and l == 0: return 0
    if g == l: return 1
    if l == 0: return 2
    if g == 0: return 3
    return 4 if (g, l) in ((2, 3), (3, 1), (1, 2)) else 5

def wmat(o, jp):
    if o == 0:
        return 0 if jp == 0 else 1
    if jp == o: return 2
    if jp == 0: return 3
    return 4

def gen_k2(a, cfg):
    NW = cfg.NW
    assert NW == 12
    CAP = 3072
    L_RAW = 0
    L_SRC = CAP * 16
    L_S = L_SRC + 12288
    L_SCR = L_S + NPB * 2048
    L_HIST = L_SCR + NW * 1024
    L_NEXT = L_HIST + 256
    L_MORE = L_HIST + 260
    L_WR = L_HIST + 512
    lds = L_WR + 6144
    ITF = cfg.QFAST_IT
    sX, sWS, sOUT, sWR = 4, 8, 12, 16
    sWAVE, sROFF, sQ, sB, sMORE, sITEM = 18, 19, 20, 21, 22, 23
    xVALID, xN, xH256, xREM, xRAWA, xSRCA, xFIRST = 24, 25, 26, 27, 28, 29, 30
    xLIM, cN, cH256, cFIRST, cREM = 31, 32, 33, 42, 43
    pN, pH256, pFIRST, pREM = 36, 37, 54, 55
    sT0, sT1, sT2, sT3 = 34, 35, 44, 45
    sKEYOFF, sM32, sHI16, s512 = 38, 39, 40, 41
    sSELLO, sSELHI, sNN, sNN2, sNODE0 = 46, 47, 48, 49, 50
    sSV = 52
    vTID, vLANE, vC16, vG16, vSLOT16, vSCRW, vSCRR, vJUNK, vINFO, vCNT, vNEXT, vSW, vONE, vWA0, vWD, vNXA = range(16)
    vF = 16
    vAD = 48
    vPB = 56
    vACC = 88
    vG = 120
    vS = 124
    vR = 128
    vT = 132
    vOA = 144
    vODDM = 160
    vREC = 16
    vKEY = 60
    vRANK = 71
    vRECA, vKEYA, vREMC, vT0, vT1, vT2, vT3, vTAB, vCHK, vQ = range(82, 92)
    vWL = 96

    a.raw(".p2align 8")
    a.raw(".globl main_kernel")
    a.raw(".type main_kernel,@function")
    a.label("main_kernel")
    a("s_cmp_ge_u32 s2, %d" % NB)
    a("s_cbranch_scc1 K2_END")
    stamp(a, cfg, 0)
    a("s_load_dwordx2 %s, s[0:1], 88" % sr(sWS, 2))
    a("s_load_dwordx2 %s, s[0:1], 0" % sr(sX, 2))
    a("s_load_dwordx2 %s, s[0:1], 72" % sr(sOUT, 2))
    a("s_load_dwordx2 %s, s[0:1], 40" % sr(sWR, 2))
    a("s_mov_b32 s%d, 5120000" % (sX + 2))
    a("s_mov_b32 s%d, 0x20000" % (sX + 3))
    a("s_mov_b32 s%d, 0x%x" % (sWS + 2, WS_BYTES))
    a("s_mov_b32 s%d, 0x20000" % (sWS + 3))
    a("s_mov_b32 s%d, 5120000" % (sOUT + 2))
    a("s_mov_b32 s%d, 0x20000" % (sOUT + 3))
    a("s_and_b32 s%d, s2, 7" % sB)
    a("s_lshl_b32 s%d, s%d, 5" % (sB, sB))
    a("s_lshr_b32 s%d, s2, 3" % sT0)
    a("s_add_u32 s%d, s%d, s%d" % (sB, sB, sT0))
    def tab_load():
        a("v_mul_u32_u24 v%d, 0xaaab, v0" % vCHK)
        a("v_lshrrev_b32 v%d, 17, v%d" % (vCHK, vCHK))
        a("v_lshlrev_b32 v%d, 2, v%d" % (vT0, vCHK))
        a("s_lshl_b32 s%d, s%d, 10" % (sT0, sB))
        a("s_add_u32 s%d, s%d, 0x%x" % (sT0, sT0, TAB_OFF))
        a("s_waitcnt lgkmcnt(0)")
        a("buffer_load_dword v%d, v%d, %s, s%d offen" % (vTAB, vT0, sr(sWS, 4), sT0))
        a("v_mad_i32_i24 v%d, v%d, -3, v0" % (vQ, vCHK))
    tab_load()
    stamp(a, cfg, 1)
    a("v_and_b32 v%d, 63, v0" % vLANE)
    a("v_lshrrev_b32 v%d, 6, v0" % vT1)
    a("v_lshrrev_b32 v%d, 3, v%d" % (vT2, vLANE))
    a("v_readfirstlane_b32 s%d, v%d" % (sWAVE, vT1))
    a("v_min_u32 v%d, 4, v%d" % (vT3, vT2))
    a("v_lshlrev_b32 v%d, 7, v%d" % (vT3, vT3))
    a("v_and_b32 v%d, 7, v0" % vT0)
    a("v_lshl_add_u32 v%d, v%d, 4, v%d" % (vT3, vT0, vT3))
    a("v_and_b32 v%d, 3, v%d" % (vT1, vT1))
    a("v_mul_u32_u24 v%d, 640, v%d" % (vT1, vT1))
    a("v_add_u32 v%d, v%d, v%d" % (vT3, vT3, vT1))
    a("global_load_dwordx4 %s, v%d, %s" % (vr(vWL, 4), vT3, sr(sWR, 2)))
    a("s_mov_b32 s%d, 0x05040100" % sSELLO)
    a("s_mov_b32 s%d, 0x07060302" % sSELHI)
    a("s_movk_i32 s%d, 512" % s512)
    a("s_mov_b32 s%d, 0x%x" % (sKEYOFF, KEY_OFF))
    a("s_movk_i32 s%d, -32" % sM32)
    a("s_mov_b32 s%d, 0xffff0000" % sHI16)
    a("s_mov_b32 s%d, 0" % sROFF)
    a("s_mov_b32 s%d, %d" % (sQ, 3 * (cfg.QSLOW_IT if cfg.FORCE_SLOW else ITF)))
    a("s_mul_i32 s%d, s%d, 625" % (sNODE0, sB))
    a("s_add_u32 s%d, s%d, %d" % (sNN, sNODE0, 625 + 15))
    a("s_add_u32 s%d, s%d, 15" % (sNODE0, sNODE0))
    a("s_lshr_b32 s%d, s%d, 4" % (sNODE0, sNODE0))
    a("s_lshr_b32 s%d, s%d, 4" % (sNN, sNN))
    a("s_sub_u32 s%d, s%d, s%d" % (sNN, sNN, sNODE0))
    a("s_lshl_b32 s%d, s%d, 1" % (sNN2, sNN))
    a("v_and_b32 v%d, 15, v0" % vC16)
    a("v_lshlrev_b32 v%d, 4, v%d" % (vC16, vC16))
    a("v_and_b32 v%d, 48, v0" % vG16)
    a("v_lshrrev_b32 v%d, 1, v%d" % (vSLOT16, vLANE))
    a("v_lshlrev_b32 v%d, 4, v%d" % (vSLOT16, vSLOT16))
    a("s_lshl_b32 s%d, s%d, 10" % (sT1, sWAVE))
    a("s_add_u32 s%d, s%d, %d" % (sT1, sT1, L_SCR))
    a("v_lshl_add_u32 v%d, v%d, 4, s%d" % (vSCRW, vLANE, sT1))
    a("v_bfe_u32 v%d, v0, 2, 2" % vT1)
    a("v_lshlrev_b32 v%d, 7, v%d" % (vSCRR, vT1))
    a("v_lshl_add_u32 v%d, v%d, 1, v%d" % (vSCRR, vG16, vSCRR))
    a("v_and_b32 v%d, 3, v0" % vT1)
    a("v_lshl_add_u32 v%d, v%d, 3, v%d" % (vSCRR, vT1, vSCRR))
    a("v_add_u32 v%d, s%d, v%d" % (vSCRR, sT1, vSCRR))
    a("v_lshlrev_b32 v%d, 4, v%d" % (vSW, vG16))
    a("v_mov_b32 v%d, 1" % vONE)
    a("v_bfe_i32 v%d, v0, 0, 1" % vODDM)
    a("v_mov_b32 v%d, %d" % (vNXA, L_NEXT))
    K = [0, 0]
    for h in range(2):
        for idx in range(8):
            K[h] |= path6(idx >> 1, 2 * h + (idx & 1)) << (4 * idx)
    a("v_lshlrev_b32 v%d, 2, v%d" % (vT1, vT2))
    a("s_mov_b32 s%d, 0x%x" % (sT0, K[0]))
    a("v_bfe_u32 v%d, s%d, v%d, 3" % (vWA0, sT0, vT1))
    a("s_mov_b32 s%d, 0x%x" % (sT0, K[1]))
    a("v_bfe_u32 v%d, s%d, v%d, 3" % (vWD, sT0, vT1))
    a("v_sub_u32 v%d, v%d, v%d" % (vWD, vWD, vWA0))
    a("v_lshlrev_b32 v%d, 8, v%d" % (vWA0, vWA0))
    a("v_lshl_add_u32 v%d, v%d, 5, v%d" % (vWA0, vT0, vWA0))
    a("v_add_u32 v%d, %d, v%d" % (vWA0, L_WR, vWA0))
    for i in range(16):
        a("v_mov_b32 v%d, 0" % (vOA + i))

    a.label("K2_ROUND")
    a("v_lshlrev_b32 v%d, 4, v0" % vT0)
    for i in range(4):
        a("v_mov_b32 v%d, -1" % (vG + i))
    a("ds_write_b128 v%d, %s offset:%d" % (vT0, vr(vG, 4), L_SRC))
    a("v_lshlrev_b32 v%d, 2, v0" % vT1)
    a("v_add_u32 v%d, %d, v%d" % (vT1, L_HIST, vT1))
    a("v_cmp_eq_u32 vcc, 64, v0")
    a("v_mov_b32 v%d, 0" % vT2)
    a("v_mov_b32 v%d, %d" % (vT3, NW))
    a("v_cndmask_b32 v%d, v%d, v%d, vcc" % (vT2, vT2, vT3))
    a("v_cmp_gt_u32 vcc, 66, v0")
    a("s_and_saveexec_b64 %s, vcc" % sr(sSV, 2))
    a("s_cbranch_execz K2_INIT1")
    a("ds_write_b32 v%d, v%d" % (vT1, vT2))
    a.label("K2_INIT1")
    a("s_mov_b64 exec, -1")
    a("s_waitcnt lgkmcnt(0)")
    a("s_barrier")
    a("s_waitcnt vmcnt(1)")
    a("s_cmp_eq_u32 s%d, 0" % sROFF)
    a("s_cbranch_scc1 K2_TABOK")
    a("s_waitcnt vmcnt(0)")
    a.label("K2_TABOK")
    stamp(a, cfg, 2)
    a("v_and_b32 v%d, 0xffff, v%d" % (vT0, vTAB))
    a("v_lshrrev_b32 v%d, 16, v%d" % (vT1, vTAB))
    a("v_cmp_gt_u32 vcc, %d, v%d" % (NCH, vCHK))
    a("v_mul_u32_u24 v%d, %d, v%d" % (vKEYA, CH, vCHK))
    a("v_add3_u32 v%d, v%d, v%d, v%d" % (vKEYA, vKEYA, vT0, vQ))
    a("v_cndmask_b32 v%d, 0, v%d, vcc" % (vT1, vT1))
    a("v_add_u32 v%d, s%d, v%d" % (vKEYA, sROFF, vKEYA))
    a("v_lshlrev_b32 v%d, 4, v%d" % (vRECA, vKEYA))
    a("v_subrev_u32 v%d, s%d, v%d" % (vT1, sROFF, vT1))
    a("v_sub_u32 v%d, v%d, v%d" % (vREMC, vT1, vQ))
    a("v_min_i32 v%d, s%d, v%d" % (vREMC, sQ, vREMC))
    for it in range(ITF):
        a("v_cmpx_lt_i32 vcc, %d, v%d" % (3 * it, vREMC))
        a("s_cbranch_execz K2_LDDONE")
        a("buffer_load_ubyte v%d, v%d, %s, s%d offen offset:%d" % (vKEY + it, vKEYA, sr(sWS, 4), sKEYOFF, 3 * it))
        a("buffer_load_dwordx4 %s, v%d, %s, 0 offen offset:%d" % (vr(vREC + 4 * it, 4), vRECA, sr(sWS, 4), 48 * it))
    a.label("K2_LDDONE")
    a("s_mov_b64 exec, -1")
    def pf_issue():
        a("s_lshr_b32 s%d, s2, 3" % sT0)
        a("s_mul_i32 s%d, s%d, %d" % (sT0, sT0, 313 * 512))
        a("v_lshrrev_b32 v%d, 1, v0" % vT2)
        a("v_lshlrev_b32 v%d, 9, v%d" % (vT2, vT2))
        a("v_and_b32 v%d, 1, v0" % vT3)
        a("v_lshl_add_u32 v%d, v%d, 7, v%d" % (vT2, vT3, vT2))
        a("buffer_load_dword v%d, v%d, %s, s%d offen" % (vJUNK, vT2, sr(sX, 4), sT0))
    npf = 0
    if cfg.PF_H0 == 1:
        pf_issue()
        npf = 1
    a("v_cmp_lt_i32 vcc, s%d, v%d" % (sQ, vT1))
    a("s_cbranch_vccz K2_NOMORE")
    a("v_mov_b32 v%d, %d" % (vT2, L_MORE))
    a("ds_write_b32 v%d, v%d" % (vT2, vONE))
    a.label("K2_NOMORE")
    a("s_waitcnt vmcnt(%d)" % npf)
    stamp(a, cfg, 3)
    if cfg.PF_H0 == 2:
        a("s_cmp_ge_u32 s%d, 10" % sWAVE)
        a("s_cbranch_scc1 K2_NOPF")
        pf_issue()
        a.label("K2_NOPF")
    a("v_mov_b32 v%d, %d" % (vT3, L_HIST))
    for it in range(ITF):
        a("v_cmpx_lt_i32 vcc, %d, v%d" % (3 * it, vREMC))
        a("s_cbranch_execz K2_RKDONE")
        a("v_lshlrev_b32 v%d, 2, v%d" % (vKEY + it, vKEY + it))
        a("v_add_u32 v%d, v%d, v%d" % (vT2, vT3, vKEY + it))
        a("ds_add_rtn_u32 v%d, v%d, v%d" % (vRANK + it, vT2, vONE))
    a.label("K2_RKDONE")
    a("s_mov_b64 exec, -1")
    a("s_cmp_lg_u32 s%d, 0" % sROFF)
    a("s_cbranch_scc1 K2_NOWR")
    a("s_cmp_ge_u32 s%d, 4" % sWAVE)
    a("s_cbranch_scc1 K2_NOWR")
    a("v_cmp_le_u32 vcc, 40, v%d" % vLANE)
    a("s_mul_i32 s%d, s%d, 1536" % (sT0, sWAVE))
    a("s_add_u32 s%d, s%d, %d" % (sT0, sT0, L_WR))
    a("v_mov_b32 v%d, 0x80008000" % vT2)
    a("v_cndmask_b32 v%d, 0, v%d, vcc" % (vT2, vT2))
    a("v_lshl_add_u32 v%d, v%d, 5, s%d" % (vT3, vLANE, sT0))
    for q in range(4):
        a("v_xor_b32 v%d, v%d, v%d" % (vT0, vT2, vWL + q))
        a("v_lshlrev_b32 v%d, 16, v%d" % (vWL + 4 + 2 * q, vT0))
        a("v_and_b32 v%d, s%d, v%d" % (vWL + 5 + 2 * q, sHI16, vT0))
    a("s_mov_b32 exec_hi, 0xffff")
    a("ds_write_b128 v%d, %s" % (vT3, vr(vWL + 4, 4)))
    a("ds_write_b128 v%d, %s offset:16" % (vT3, vr(vWL + 8, 4)))
    a("s_mov_b64 exec, -1")
    a.label("K2_NOWR")
    a("v_lshlrev_b32 v%d, 2, v%d" % (vT0, vLANE))
    a("v_add_u32 v%d, %d, v%d" % (vT0, L_HIST, vT0))
    a("v_mov_b32 v%d, %d" % (vT2, L_MORE))
    a("s_waitcnt lgkmcnt(0)")
    a("s_barrier")
    stamp(a, cfg, 4)
    a("ds_read_b32 v%d, v%d" % (vCNT, vT0))
    a("ds_read_b32 v%d, v%d" % (vT2, vT2))
    a("s_waitcnt lgkmcnt(0)")
    a("v_add_u32 v%d, 31, v%d" % (vT0, vCNT))
    a("v_and_b32 v%d, s%d, v%d" % (vT0, sM32, vT0))
    a("v_lshl_or_b32 v%d, v%d, 16, v%d" % (vT0, vT0, vCNT))
    a("v_add_u32 v%d, 1, v%d" % (vT0, vT0))
    a("v_mov_b32 v%d, v%d" % (vINFO, vT0))
    a("v_readfirstlane_b32 s%d, v%d" % (sMORE, vT2))
    wave_scan(a, vINFO)
    a("s_nop 0")
    a("v_readlane_b32 s%d, v%d, 63" % (sT0, vINFO))
    a("v_sub_u32 v%d, v%d, v%d" % (vINFO, vINFO, vT0))
    a("s_cmp_lg_u32 s%d, %d" % (sQ, 3 * ITF))
    a("s_cbranch_scc1 K2_OK")
    a("s_and_b32 s%d, s%d, 0xffff" % (sT0, sT0))
    a("s_cmp_gt_u32 s%d, %d" % (sT0, CAP))
    a("s_cselect_b32 s%d, 1, s%d" % (sT0, sMORE))
    a("s_cmp_eq_u32 s%d, 0" % sT0)
    a("s_cbranch_scc1 K2_OK")
    a("s_mov_b32 s%d, %d" % (sQ, 3 * cfg.QSLOW_IT))
    a("s_barrier")
    a("s_branch K2_ROUND")
    a.label("K2_OK")
    for it in range(ITF):
        a("v_cmp_lt_i32 vcc, %d, v%d" % (3 * it, vREMC))
        a("s_cbranch_vccz K2_BPDONE")
        a("ds_bpermute_b32 v%d, v%d, v%d" % (vKEY + it, vKEY + it, vINFO))
    a.label("K2_BPDONE")
    a("s_cmp_lg_u32 s%d, 11" % sWAVE)
    a("s_cbranch_scc1 K2_NOZR")
    a("v_and_b32 v%d, 0xffff, v%d" % (vT0, vINFO))
    a("v_add_lshl_u32 v%d, v%d, v%d, 4" % (vT0, vT0, vCNT))
    for i in range(4):
        a("v_mov_b32 v%d, 0" % (vG + i))
    a("ds_write_b128 v%d, %s offset:%d" % (vT0, vr(vG, 4), L_RAW))
    a.label("K2_NOZR")
    a("v_mov_b32 v%d, 0x3f80" % vT3)
    a("s_waitcnt lgkmcnt(0)")
    for it in range(ITF):
        k, p = vKEY + it, vRANK + it
        a("v_cmpx_lt_i32 vcc, %d, v%d" % (3 * it, vREMC))
        a("s_cbranch_execz K2_WRDONE")
        a("v_bfe_u32 v%d, v%d, 2, 3" % (vT1, p))
        a("v_and_b32 v%d, 3, v%d" % (vT2, p))
        a("v_lshl_or_b32 v%d, v%d, 3, v%d" % (vT1, vT2, vT1))
        a("v_and_or_b32 v%d, v%d, s%d, v%d" % (vT1, p, sM32, vT1))
        a("v_lshrrev_b32 v%d, 16, v%d" % (vT2, k))
        a("v_add_lshl_u32 v%d, v%d, v%d, 1" % (vT1, vT1, vT2))
        a("ds_write_b16 v%d, v%d offset:%d" % (vT1, vREC + 4 * it + 2, L_SRC))
        a("v_and_b32 v%d, 0xffff, v%d" % (vT0, k))
        a("v_add_lshl_u32 v%d, v%d, v%d, 4" % (vT0, vT0, p))
        a("v_bfi_b32 v%d, s%d, v%d, v%d" % (vREC + 4 * it + 2, sHI16, vREC + 4 * it + 2, vT3))
        a("ds_write_b128 v%d, %s offset:%d" % (vT0, vr(vREC + 4 * it, 4), L_RAW))
    a.label("K2_WRDONE")
    a("s_mov_b64 exec, -1")
    a("s_mov_b32 s%d, s%d" % (sITEM, sWAVE))
    a("s_mov_b32 s%d, 1" % xVALID)
    a("s_mov_b32 s%d, 64" % cREM)
    a("s_mov_b32 s%d, 1" % cFIRST)

    def new_item():
        a("s_mov_b64 exec, 1")
        a("ds_add_rtn_u32 v%d, v%d, v%d" % (vNEXT, vNXA, vONE))
        a("s_mov_b64 exec, -1")
        a("s_cmp_ge_u32 s%d, s%d" % (sITEM, sNN))
        a("s_cselect_b32 s%d, 256, 0" % xH256)
        a("s_cselect_b32 s%d, s%d, 0" % (sT0, sNN))
        a("s_sub_u32 s%d, s%d, s%d" % (xN, sITEM, sT0))
        a("v_readlane_b32 s%d, v%d, s%d" % (sT1, vINFO, xN))
        a("v_readlane_b32 s%d, v%d, s%d" % (xREM, vCNT, xN))
        a("s_and_b32 s%d, s%d, 0xffff" % (xRAWA, sT1))
        a("s_add_u32 s%d, s%d, s%d" % (xLIM, xRAWA, xREM))
        a("s_lshl_b32 s%d, s%d, 4" % (xRAWA, xRAWA))
        a("s_lshl_b32 s%d, s%d, 4" % (xLIM, xLIM))
        a("s_lshr_b32 s%d, s%d, 16" % (xSRCA, sT1))
        a("s_lshl_b32 s%d, s%d, 1" % (xSRCA, xSRCA))
        a("s_mov_b32 s%d, 1" % xFIRST)
    def read_s():
        a("v_add_u32 v%d, s%d, v%d" % (vT + 10, xSRCA, vG16))
        a("ds_read_b128 %s, v%d offset:%d" % (vr(vS, 4), vT + 10, L_SRC))
    def read_r():
        a("v_add_u32 v%d, s%d, v%d" % (vT + 11, xRAWA, vSLOT16))
        a("v_min_u32 v%d, s%d, v%d" % (vT + 11, xLIM, vT + 11))
        a("ds_read_b128 %s, v%d offset:%d" % (vr(vR, 4), vT + 11, L_RAW))
    def mads():
        for i in range(8):
            a("v_mad_u32_u16 v%d, v%d, s%d, v%d%s" % (vAD + i, vS + (i >> 1), s512, vC16, " op_sel:[1,0,0,0]" if i & 1 else ""))
    def mfmas(tag):
        a("s_cmp_eq_u32 s%d, 0" % cFIRST)
        a("s_cbranch_scc1 K2_MFACC%s" % tag)
        for j in range(8):
            a("v_mfma_f32_16x16x32_bf16 %s, %s, %s, 0" % (vr(vACC + 4 * j, 4), vr(vG, 4), vr(vPB + 4 * j, 4)))
        a("s_branch K2_MFDONE%s" % tag)
        a.label("K2_MFACC%s" % tag)
        for j in range(8):
            a("v_mfma_f32_16x16x32_bf16 %s, %s, %s, %s" % (vr(vACC + 4 * j, 4), vr(vG, 4), vr(vPB + 4 * j, 4), vr(vACC + 4 * j, 4)))
        a.label("K2_MFDONE%s" % tag)
    def epi_reads():
        a("v_mad_i32_i24 v%d, v%d, s%d, v%d" % (vT + 10, vWD, cH256, vWA0))
        for d in range(4):
            a("ds_read_b128 %s, v%d offset:%d" % (vr(vPB + 8 * d, 4), vT + 10, d * 1536))
            a("ds_read_b128 %s, v%d offset:%d" % (vr(vPB + 8 * d + 4, 4), vT + 10, d * 1536 + 16))
    def epi(nyounger):
        a("s_and_b32 s%d, s%d, 15" % (sT0, cN))
        a("s_lshl_b32 s%d, s%d, 4" % (sT0, sT0))
        a("s_lshl_b32 s%d, s%d, 11" % (sT1, cN))
        a("s_lshl_b32 s%d, s%d, 2" % (sT2, cH256))
        a("s_add_u32 s%d, s%d, s%d" % (sT1, sT1, sT2))
        a("v_xor_b32 v%d, s%d, v%d" % (vT + 10, sT0, vC16))
        a("v_add3_u32 v%d, v%d, v%d, s%d" % (vT + 10, vT + 10, vSW, sT1))
        a("s_waitcnt lgkmcnt(%d)" % nyounger)
        for d in range(4):
            for j in range(8):
                op = "v_mul_f32" if d == 0 else "v_fmac_f32"
                a("%s v%d, v%d, v%d" % (op, vT + j, vACC + 4 * j + d, vPB + 8 * d + j))
        for q in range(4):
            a("v_cvt_pk_bf16_f32 v%d, v%d, v%d" % (vS + q, vT + 2 * q, vT + 2 * q + 1))
        a("ds_write_b128 v%d, %s offset:%d" % (vT + 10, vr(vS, 4), L_S))

    a("s_waitcnt lgkmcnt(0)")
    a("s_barrier")
    stamp(a, cfg, 5)
    new_item()
    read_s()
    read_r()
    a("s_waitcnt lgkmcnt(0)")
    mads()
    a("s_branch K2_ISSUE")

    a.label("K2_TOP")
    a("s_waitcnt vmcnt(0) lgkmcnt(0)")
    for p in range(4):
        if cfg.ABL & 1: break
        a("s_cmp_le_i32 s%d, %d" % (cREM, 8 * p))
        a("s_cbranch_scc1 K2_PZ%d" % p)
        for j in range(8):
            q, sel = j >> 1, (sSELHI if j & 1 else sSELLO)
            a("v_perm_b32 v%d, v%d, v%d, s%d" % (vPB + 4 * j + p, vF + 4 * (2 * p + 1) + q, vF + 4 * (2 * p) + q, sel))
    a.label("K2_ISSUE")
    a("s_cmp_eq_u32 s%d, 0" % xVALID)
    a("s_cbranch_scc1 K2_TAIL")
    for i in range(8):
        a("s_cmp_le_i32 s%d, %d" % (xREM, 4 * i))
        a("s_cbranch_scc1 %s" % ("K2_Z%d" % i if i & 1 else "K2_ISSUED"))
        a("buffer_load_dwordx4 %s, v%d, %s, s%d offen" % (vr(vF + 4 * i, 4), vAD + i, sr(sX, 4), xH256))
    a.label("K2_ISSUED")
    a("s_mov_b32 s%d, s%d" % (pN, xN))
    a("s_mov_b32 s%d, s%d" % (pH256, xH256))
    a("s_mov_b32 s%d, s%d" % (pFIRST, xFIRST))
    a("s_mov_b32 s%d, s%d" % (pREM, xREM))
    a("s_cmp_gt_i32 s%d, 32" % xREM)
    a("s_cbranch_scc0 K2_NEWITEM")
    a("s_sub_i32 s%d, s%d, 32" % (xREM, xREM))
    a("s_add_u32 s%d, s%d, 512" % (xRAWA, xRAWA))
    a("s_add_u32 s%d, s%d, 64" % (xSRCA, xSRCA))
    a("s_mov_b32 s%d, 0" % xFIRST)
    a.label("K2_HAVE")
    read_s()
    if not cfg.ABL & 2: mfmas("")
    a("s_waitcnt lgkmcnt(0)")
    mads()
    a("s_cmp_gt_i32 s%d, 32" % cREM)
    a("s_cbranch_scc1 K2_NOER")
    if not cfg.ABL & 8: epi_reads()
    a.label("K2_NOER")
    if cfg.ABL & 4: a("s_branch K2_ABL4")
    e = vT
    ya = vT + 4
    pr = vT + 6
    a("v_bfi_b32 v%d, v%d, v%d, v%d" % (ya + 1, vODDM, vR + 3, vR + 2))
    a("v_lshlrev_b32 v%d, 16, v%d" % (e + 0, vR + 0))
    a("v_and_b32 v%d, s%d, v%d" % (e + 1, sHI16, vR + 0))
    a("v_lshlrev_b32 v%d, 16, v%d" % (ya, ya + 1))
    a("v_lshlrev_b32 v%d, 16, v%d" % (e + 2, vR + 1))
    a("v_and_b32 v%d, s%d, v%d" % (e + 3, sHI16, vR + 1))
    a("v_and_b32 v%d, s%d, v%d" % (ya + 1, sHI16, ya + 1))
    for hh in range(2):
        for d in range(4):
            a("v_mul_f32 v%d, v%d, v%d" % (pr + d, e + d, ya + hh))
        a("v_cvt_pk_bf16_f32 v%d, v%d, v%d" % (vR + 2 * hh, pr, pr + 1))
        a("v_cvt_pk_bf16_f32 v%d, v%d, v%d" % (vR + 2 * hh + 1, pr + 2, pr + 3))
    a("ds_write_b128 v%d, %s" % (vSCRW, vr(vR, 4)))
    a("ds_read_b64_tr_b16 %s, v%d" % (vr(vG, 2), vSCRR))
    a("ds_read_b64_tr_b16 %s, v%d offset:512" % (vr(vG + 2, 2), vSCRR))
    a.label("K2_ABL4")
    read_r()
    a("s_cmp_gt_i32 s%d, 32" % cREM)
    a("s_cbranch_scc1 K2_NOEPI")
    if not cfg.ABL & 8: epi(1 if cfg.ABL & 4 else 4)
    a.label("K2_NOEPI")
    a("s_mov_b32 s%d, s%d" % (cN, pN))
    a("s_mov_b32 s%d, s%d" % (cH256, pH256))
    a("s_mov_b32 s%d, s%d" % (cFIRST, pFIRST))
    a("s_mov_b32 s%d, s%d" % (cREM, pREM))
    a("s_branch K2_TOP")
    a.label("K2_NEWITEM")
    a("v_readfirstlane_b32 s%d, v%d" % (sITEM, vNEXT))
    a("s_cmp_lt_u32 s%d, s%d" % (sITEM, sNN2))
    a("s_cselect_b32 s%d, 1, 0" % xVALID)
    a("s_cbranch_scc0 K2_HAVE")
    new_item()
    a("s_branch K2_HAVE")
    for i in (1, 3, 5, 7):
        a.label("K2_Z%d" % i)
        for q in range(4):
            a("v_mov_b32 v%d, 0" % (vF + 4 * i + q))
        a("s_branch K2_ISSUED")
    for p in range(4):
        a.label("K2_PZ%d" % p)
        for j in range(8):
            a("v_mov_b32 v%d, 0" % (vPB + 4 * j + p))
    a("s_branch K2_ISSUE")
    a.label("K2_TAIL")
    vWT = vF
    a("v_lshlrev_b32 v%d, 3, v%d" % (vT + 0, vC16))
    a("v_add_u32 v%d, v%d, v%d" % (vT + 0, vT + 0, vG16))
    a("s_and_b32 s%d, s%d, 3" % (sT0, sWAVE))
    a("s_lshl_b32 s%d, s%d, 11" % (sT0, sT0))
    a("s_add_u32 s%d, s%d, 0x%x" % (sT0, sT0, WT_OFF))
    for mat in range(5):
        for ch in range(2):
            a("buffer_load_dwordx4 %s, v%d, %s, s%d offen offset:%d" % (vr(vWT + 8 * mat + 4 * ch, 4), vT + 0, sr(sWS, 4), sT0, ch * 64))
        if mat < 4:
            a("s_add_u32 s%d, s%d, 8192" % (sT0, sT0))
    mfmas("T")
    epi_reads()
    epi(0)

    stamp(a, cfg, 6)
    vB = vPB
    vA4 = vT
    vU0, vU1, vU2 = vT + 4, vT + 5, vT + 6
    sMT, sNT = sT2, sT3
    a("s_lshr_b32 s%d, s%d, 2" % (sMT, sWAVE))
    a("s_and_b32 s%d, s%d, 3" % (sNT, sWAVE))
    a("v_xor_b32 v%d, v%d, v%d" % (vU1, vG16, vC16))
    a("v_lshlrev_b32 v%d, 7, v%d" % (vU2, vC16))
    a("s_lshl_b32 s%d, s%d, 15" % (sT0, sMT))
    a("s_add_u32 s%d, s%d, %d" % (sT0, sT0, L_S))
    a("s_waitcnt lgkmcnt(0)")
    for cmb in range(4):
        a("v_xor_b32 v%d, %d, v%d" % (vA4 + cmb, cmb * 64, vU1))
        a("v_add3_u32 v%d, v%d, v%d, s%d" % (vA4 + cmb, vA4 + cmb, vU2, sT0))
    a("s_barrier")
    stamp(a, cfg, 7)
    for half in range(2):
        seq = []
        for o in (2 * half, 2 * half + 1):
            for jp in range(4):
                for ch in range(2):
                    seq.append((o, jp, ch))
        for idx, (o, jp, ch) in enumerate(seq):
            l = jp ^ o
            if idx == 15:
                a("s_waitcnt lgkmcnt(14)")
            a("ds_read_b128 %s, v%d offset:%d" % (vr(vB + 4 * idx, 4), vA4 + (l & 1) * 2 + ch, (l >> 1) * 1024 + jp * 256))
        if half == 0:
            a("s_waitcnt vmcnt(0)")
        for idx, (o, jp, ch) in enumerate(seq):
            a("s_waitcnt lgkmcnt(%d)" % (15 - idx))
            a("v_mfma_f32_16x16x32_bf16 %s, %s, %s, %s" % (vr(vOA + 4 * o, 4), vr(vWT + 8 * wmat(o, jp) + 4 * ch, 4), vr(vB + 4 * idx, 4), vr(vOA + 4 * o, 4)))
    a("s_cmp_eq_u32 s%d, 0" % sMORE)
    a("s_cbranch_scc1 K2_FINAL")
    a("s_add_u32 s%d, s%d, s%d" % (sROFF, sROFF, sQ))
    tab_load()
    a("s_branch K2_ROUND")
    a.label("K2_FINAL")
    a("s_lshl_b32 s%d, s%d, 9" % (sT0, sNODE0))
    a("s_lshl_b32 s%d, s%d, 13" % (sT1, sMT))
    a("s_add_u32 s%d, s%d, s%d" % (sT0, sT0, sT1))
    a("s_lshl_b32 s%d, s%d, 5" % (sT1, sNT))
    a("s_add_u32 s%d, s%d, s%d" % (sT0, sT0, sT1))
    a("v_lshlrev_b32 v%d, 5, v%d" % (vU0, vC16))
    a("v_lshrrev_b32 v%d, 1, v%d" % (vU1, vG16))
    a("v_add3_u32 v%d, v%d, v%d, s%d" % (vU0, vU0, vU1, sT0))
    a("s_lshl_b32 s%d, s%d, 8" % (sT1, sMT))
    a("v_add_u32 v%d, s%d, v%d" % (vU1, sT1, vC16))
    a("s_lshl_b32 s%d, s%d, 4" % (sT1, sNN))
    a("v_cmp_gt_u32 vcc, s%d, v%d" % (sT1, vU1))
    a("s_mov_b32 s%d, 0xbfb8aa3b" % sT0)
    vE = vF
    for r in range(4):
        a("v_mul_f32 v%d, s%d, v%d" % (vE + r, sT0, vOA + r))
    for r in range(4):
        a("v_exp_f32 v%d, v%d" % (vE + r, vE + r))
    for r in range(4):
        a("v_add_f32 v%d, 1.0, v%d" % (vE + r, vE + r))
    for r in range(4):
        a("v_rcp_f32 v%d, v%d" % (vE + r, vE + r))
    a("v_cvt_pk_bf16_f32 v%d, v%d, v%d" % (vE + 8, vOA + 0, vOA + 1))
    a("v_cvt_pk_bf16_f32 v%d, v%d, v%d" % (vE + 9, vOA + 2, vOA + 3))
    for o in range(1, 4):
        for r in range(4):
            a("v_mul_f32 v%d, v%d, v%d" % (vOA + 4 * o + r, vOA + 4 * o + r, vE + r))
        a("v_cvt_pk_bf16_f32 v%d, v%d, v%d" % (vE + 8 + 2 * o, vOA + 4 * o, vOA + 4 * o + 1))
        a("v_cvt_pk_bf16_f32 v%d, v%d, v%d" % (vE + 9 + 2 * o, vOA + 4 * o + 2, vOA + 4 * o + 3))
    a("s_and_saveexec_b64 %s, vcc" % sr(sSV, 2))
    a("s_cbranch_execz K2_STDONE")
    for o in range(4):
        a("buffer_store_dwordx2 %s, v%d, %s, 0 offen offset:%d" % (vr(vE + 8 + 2 * o, 2), vU0, sr(sOUT, 4), o * 128))
    a.label("K2_STDONE")
    if cfg.TS:
        stamp(a, cfg, 8)
        a("s_waitcnt vmcnt(0)")
        stamp(a, cfg, 9)
        stamp_flush(a, cfg, 1, 10, sWS, 161, 162, sT0)
    a.label("K2_END")
    a("s_endpgm")
    return lds

def kd(name, vgpr, sgpr):
    acc = (vgpr + 3) // 4 * 4
    return """.p2align 6
.amdhsa_kernel %s
  .amdhsa_next_free_vgpr %d
  .amdhsa_next_free_sgpr %d
  .amdhsa_accum_offset %d
  .amdhsa_group_segment_fixed_size 0
  .amdhsa_kernarg_size 96
  .amdhsa_user_sgpr_count 2
  .amdhsa_user_sgpr_kernarg_segment_ptr 1
  .amdhsa_system_sgpr_workgroup_id_x 1
  .amdhsa_float_denorm_mode_32 3
.end_amdhsa_kernel
""" % (name, vgpr, sgpr, acc)

def build(cfg):
    a = Asm()
    lds1 = gen_k1(a, cfg)
    lds2 = gen_k2(a, cfg)
    hdr = open("cdna_kernels/%s.s.ref" % NAME).read().split("\n")
    head = [l for l in hdr if l.startswith(";") and "@launch" not in l and "Override" not in l and "grid=ceil" not in l]
    out = "\n".join(head) + "\n"
    out += "; @launch kernel=bin_kernel grid=(256,1,1) block=(640,1,1) lds=%d\n" % lds1
    out += "; @launch kernel=main_kernel grid=(%d,1,1) block=(%d,1,1) lds=%d\n" % (NB, cfg.NW * 64, lds2)
    out += '.amdgcn_target "amdgcn-amd-amdhsa--gfx950"\n.text\n'
    out += a.text()
    out += '.section .rodata,"a"\n'
    out += kd("bin_kernel", 64, 90 if cfg.TS else 32)
    out += kd("main_kernel", 164, 90 if cfg.TS else 56)
    return out

if __name__ == "__main__":
    cfg = Cfg()
    outp = "cdna_kernels/%s.s" % NAME
    for arg in sys.argv[1:]:
        if "=" in arg:
            k, v = arg.split("=")
            assert hasattr(cfg, k), k
            setattr(cfg, k, int(v))
        else:
            outp = arg
    open(outp, "w").write(build(cfg))
    print("wrote", outp)
```

```python
import sys

NAME = "standalone__tensor_product_equiv_equiformer__graph"

class Cfg:
    NW = 12
    TS = 0
    PF_H0 = 0
    K1_TOUCH = 0
    K1_WSTOUCH = 1
    QFAST_IT = 11
    QSLOW_IT = 4
    FORCE_SLOW = 0
    ABL = 0
    V1 = 1
    GW = 12
    K1_LD = 1
    K1_ST = 1
    K1_DSTFIRST = 1

NCH = 250
NB = 256
NPB = 40
CH = 2560
REC_OFF = 0
KEY_OFF = 0x9D0000
TAB_OFF = 0xA80000
WT_OFF = 0xAC0000
TS_OFF = 0xB00000
WS_BYTES = 0x1000000

class Asm:
    def __init__(self):
        self.l = []
    def __call__(self, s):
        self.l.append("    " + s)
    def label(self, s):
        self.l.append(s + ":")
    def raw(self, s):
        self.l.append(s)
    def text(self):
        return "\n".join(self.l) + "\n"

def vr(a, n):
    return "v[%d:%d]" % (a, a + n - 1)
def sr(a, n):
    return "s[%d:%d]" % (a, a + n - 1)

def wave_scan(a, v):
    for m in ("row_shr:1 row_mask:0xf", "row_shr:2 row_mask:0xf", "row_shr:4 row_mask:0xf",
              "row_shr:8 row_mask:0xf", "row_bcast:15 row_mask:0xa", "row_bcast:31 row_mask:0xc"):
        a("s_nop 1")
        a("v_add_u32_dpp v%d, v%d, v%d %s bank_mask:0xf" % (v, v, v, m))

TSB = 64
def stamp(a, cfg, idx):
    if cfg.TS:
        a("s_memrealtime %s" % sr(TSB + 2 * idx, 2))

def stamp_flush(a, cfg, kern, n, s_ws, va, vb, s_tmp):
    if not cfg.TS:
        return
    a("s_mov_b64 exec, -1")
    a("s_lshl_b32 s%d, s2, 10" % s_tmp)
    a("s_add_u32 s%d, s%d, 0x%x" % (s_tmp, s_tmp, TS_OFF + kern * 0x40000))
    a("v_lshrrev_b32 v%d, 6, v0" % va)
    a("v_lshlrev_b32 v%d, 6, v%d" % (va, va))
    a("v_add_u32 v%d, s%d, v%d" % (va, s_tmp, va))
    a("s_waitcnt lgkmcnt(0)")
    for i in range(n):
        a("v_mov_b32 v%d, s%d" % (vb, TSB + 2 * i))
        a("global_store_dword v%d, v%d, %s offset:%d" % (va, vb, sr(s_ws, 2), i * 4))

def k1_pf(a, va, vb):
    a("s_lshr_b32 s24, s2, 3")
    a("s_mul_i32 s24, s24, 313")
    a("v_lshrrev_b32 v%d, 1, v0" % va)
    a("v_add_u32 v%d, s24, v%d" % (va, va))
    a("v_min_u32 v%d, 9999, v%d" % (va, va))
    a("v_lshlrev_b32 v%d, 9, v%d" % (va, va))
    a("v_and_b32 v%d, 1, v0" % vb)
    a("v_lshl_add_u32 v%d, v%d, 7, v%d" % (va, vb, va))
    a("global_load_dword v%d, v%d, s[14:15]" % (vb, va))

def gen_k1(a, cfg):
    L_BASE = 1024
    L_REC = 12288
    L_KEY = L_REC + CH * 16
    lds = L_KEY + CH
    a.raw(".p2align 8")
    a.raw(".globl bin_kernel")
    a.raw(".type bin_kernel,@function")
    a.label("bin_kernel")
    a("s_cmp_ge_u32 s2, %d" % NCH)
    a("s_cbranch_scc1 K1_EXTRA")
    stamp(a, cfg, 0)
    a("s_load_dwordx4 s[8:11], s[0:1], 24")
    a("s_load_dwordx4 s[4:7], s[0:1], 8")
    a("s_load_dwordx2 s[12:13], s[0:1], 88")
    a("s_load_dwordx2 s[14:15], s[0:1], 0")
    a("s_mul_i32 s16, s2, 640")
    a("v_add_u32 v1, s16, v0")
    a("v_lshlrev_b32 v2, 4, v1")
    a("v_lshlrev_b32 v3, 5, v1")
    a("v_mul_u32_u24 v4, 24, v1")
    a("v_lshlrev_b32 v5, 2, v0")
    a("v_mov_b32 v6, 0")
    a("ds_write_b32 v5, v6")
    a("v_lshrrev_b32 v30, 6, v0")
    a("v_and_b32 v31, 63, v0")
    a("s_mul_i32 s17, s2, 20480")
    a("v_lshlrev_b32 v7, 11, v30")
    a("v_lshl_add_u32 v7, v31, 7, v7")
    a("v_add_u32 v7, s17, v7")
    a("s_movk_i32 s18, 625")
    a("v_lshlrev_b32 v40, 4, v0")
    a("s_mul_i32 s20, s2, %d" % (CH * 16))
    a("v_add_u32 v57, s20, v40")
    a("s_mul_i32 s20, s2, %d" % CH)
    a("s_add_u32 s20, s20, 0x%x" % KEY_OFF)
    a("v_add_u32 v58, s20, v5")
    a("s_waitcnt lgkmcnt(0)")
    stamp(a, cfg, 1)
    a("v_mov_b32 v6, 1")
    ld = " nt" if cfg.K1_LD else ""
    st = ["", " sc1", " nt", " sc0 sc1"][cfg.K1_ST]
    a("global_load_dwordx4 v[8:11], v2, s[10:11]" + ld)
    if cfg.K1_DSTFIRST:
        a("s_barrier")
    a("global_load_dwordx4 v[12:15], v2, s[8:9]" + ld)
    a("global_load_dwordx4 v[16:19], v3, s[6:7]" + ld)
    a("global_load_dwordx4 v[20:23], v3, s[6:7] offset:16" + ld)
    a("global_load_dwordx4 v[24:27], v4, s[4:5]" + ld)
    a("global_load_dwordx2 v[28:29], v4, s[4:5] offset:16" + ld)
    nyoung = 5
    if cfg.K1_TOUCH == 1:
        a("s_mov_b64 exec, 0xffff")
        a("global_load_dword v7, v7, s[14:15]")
        a("s_mov_b64 exec, -1")
        nyoung += 1
    if cfg.K1_WSTOUCH:
        a("s_mov_b64 exec, 1")
        a("global_load_dword v59, v57, s[12:13]")
        a("global_load_dword v60, v58, s[12:13]")
        a("s_mov_b64 exec, -1")
        nyoung += 2
    if not cfg.K1_DSTFIRST:
        a("s_barrier")
    a("s_waitcnt vmcnt(%d)" % nyoung)
    stamp(a, cfg, 2)
    for k in range(4):
        a("v_mul_u32_u24 v%d, 429497, v%d" % (32 + k, 8 + k))
        a("v_lshrrev_b32 v%d, 24, v%d" % (32 + k, 32 + k))
        a("v_mad_u32_u24 v41, v%d, s18, 15" % (32 + k))
        a("v_lshlrev_b32 v%d, 2, v%d" % (32 + k, 32 + k))
        a("ds_add_rtn_u32 v%d, v%d, v6" % (36 + k, 32 + k))
        a("v_lshrrev_b32 v41, 4, v41")
        a("v_sub_u32 v%d, v%d, v41" % (8 + k, 8 + k))
    a("v_lshlrev_b32 v43, 4, v31")
    a("v_lshlrev_b32 v41, 10, v30")
    a("s_waitcnt lgkmcnt(0)")
    a("s_barrier")
    stamp(a, cfg, 3)
    a("ds_read_b128 v[44:47], v43")
    a("v_add_u32 v42, v43, v41")
    for k in range(4):
        a("v_add_u32 v%d, v%d, v41" % (32 + k, 32 + k))
    a("s_waitcnt lgkmcnt(0)")
    a("v_add_u32 v49, v44, v45")
    a("v_add_u32 v50, v49, v46")
    a("v_add_u32 v51, v50, v47")
    a("v_mov_b32 v52, v51")
    wave_scan(a, 52)
    a("v_sub_u32 v52, v52, v51")
    a("v_add_u32 v53, v52, v44")
    a("v_add_u32 v54, v52, v49")
    a("v_add_u32 v55, v52, v50")
    a("ds_write_b128 v42, v[52:55] offset:%d" % L_BASE)
    a("s_waitcnt lgkmcnt(0)")
    for k in range(4):
        a("ds_read_b32 v%d, v%d offset:%d" % (32 + k, 32 + k, L_BASE))
    a("v_readfirstlane_b32 s19, v30")
    a("s_cmp_lg_u32 s19, 0")
    a("s_cbranch_scc1 K1_NOTAB")
    a("s_lshl_b32 s20, s2, 2")
    a("s_add_u32 s20, s20, 0x%x" % TAB_OFF)
    a("v_lshlrev_b32 v56, 12, v31")
    a("v_add_u32 v56, s20, v56")
    for k in range(4):
        a("v_lshl_or_b32 v%d, v%d, 16, v%d" % (52 + k, 44 + k, 52 + k))
        a("global_store_dword v56, v%d, s[12:13] offset:%d" % (52 + k, k * 1024))
    a("s_waitcnt vmcnt(%d)" % (4 + nyoung - 5))
    a("s_branch K1_TABDONE")
    a.label("K1_NOTAB")
    a("s_waitcnt vmcnt(%d)" % (nyoung - 5))
    a.label("K1_TABDONE")
    stamp(a, cfg, 4)
    if cfg.K1_TOUCH == 2:
        a("s_mov_b64 exec, 0xffff")
        a("global_load_dword v7, v7, s[14:15]")
        a("s_mov_b64 exec, -1")
    if cfg.K1_TOUCH in (3, 4):
        k1_pf(a, 61, 62)
    if cfg.K1_TOUCH in (3, 5):
        a("v_lshrrev_b32 v3, 1, v31")
        a("v_lshl_add_u32 v3, v30, 2, v3")
        a("v_lshlrev_b32 v3, 9, v3")
        a("v_and_b32 v4, 1, v31")
        a("v_lshl_add_u32 v3, v4, 7, v3")
        a("v_add_u32 v3, s17, v3")
        a("s_mov_b64 exec, 0xff")
        a("global_load_dword v4, v3, s[14:15] offset:256")
        a("s_mov_b64 exec, -1")
    a("s_mov_b32 s21, 0x05040100")
    a("s_mov_b32 s22, 0x07060100")
    a("v_mov_b32 v44, v16")
    a("v_mov_b32 v45, v17")
    a("v_perm_b32 v46, v24, v12, s21")
    a("v_alignbit_b32 v47, v25, v24, 16")
    a("v_mov_b32 v48, v18")
    a("v_mov_b32 v49, v19")
    a("v_perm_b32 v50, v25, v13, s22")
    a("v_mov_b32 v51, v26")
    a("v_mov_b32 v16, v20")
    a("v_mov_b32 v17, v21")
    a("v_perm_b32 v18, v27, v14, s21")
    a("v_alignbit_b32 v19, v28, v27, 16")
    a("v_perm_b32 v24, v28, v15, s22")
    a("v_mov_b32 v25, v29")
    recs = [44, 48, 16, 22]
    a("s_waitcnt lgkmcnt(0)")
    for k in range(4):
        a("v_add_u32 v%d, v%d, v%d" % (32 + k, 32 + k, 36 + k))
        a("v_lshlrev_b32 v%d, 4, v%d" % (36 + k, 32 + k))
        a("ds_write_b128 v%d, %s offset:%d" % (36 + k, vr(recs[k], 4), L_REC))
        a("ds_write_b8 v%d, v%d offset:%d" % (32 + k, 8 + k, L_KEY))
    a("v_add_u32 v43, 0x5000, v57")
    a("s_waitcnt lgkmcnt(0)")
    a("s_barrier")
    stamp(a, cfg, 5)
    for k in range(4):
        a("ds_read_b128 %s, v40 offset:%d" % (vr(8 + 4 * k, 4), L_REC + k * 10240))
    a("ds_read_b32 v24, v5 offset:%d" % L_KEY)
    a("v_add_u32 v44, 0x2800, v57")
    a("v_add_u32 v45, 0x7800, v57")
    for k, va in enumerate([57, 44, 43, 45]):
        a("s_waitcnt lgkmcnt(%d)" % (4 - k))
        a("global_store_dwordx4 v%d, %s, s[12:13]" % (va, vr(8 + 4 * k, 4)) + st)
    a("s_waitcnt lgkmcnt(0)")
    a("global_store_dword v58, v24, s[12:13]" + st)
    if cfg.TS:
        stamp(a, cfg, 6)
        if cfg.TS == 1:
            a("s_waitcnt vmcnt(0)")
        stamp(a, cfg, 7)
        stamp_flush(a, cfg, 0, 8, 12, 1, 2, 30)
    if cfg.K1_TOUCH in (5, 6):
        k1_pf(a, 61, 62)
    a("s_endpgm")
    a.label("K1_EXTRA")
    a("s_cmp_gt_u32 s2, %d" % (NCH + 5))
    a("s_cbranch_scc1 K1_END")
    if cfg.K1_TOUCH >= 3:
        a("s_load_dwordx2 s[14:15], s[0:1], 0")
        a("s_waitcnt lgkmcnt(0)")
        k1_pf(a, 20, 21)
    a("s_cmp_eq_u32 s2, %d" % (NCH + 5))
    a("s_cbranch_scc1 K1_TABZ")
    a("s_load_dwordx4 s[4:7], s[0:1], 48")
    a("s_load_dwordx2 s[12:13], s[0:1], 88")
    a("s_sub_u32 s16, s2, %d" % NCH)
    a("v_cmp_gt_u32 vcc, 512, v0")
    a("v_lshrrev_b32 v1, 3, v0")
    a("v_and_b32 v2, 7, v0")
    a("v_lshlrev_b32 v3, 10, v2")
    a("v_lshl_add_u32 v3, v1, 1, v3")
    a("v_lshrrev_b32 v4, 4, v1")
    a("v_mul_u32_u24 v4, 10240, v4")
    a("v_lshl_add_u32 v4, v2, 8, v4")
    a("v_and_b32 v5, 15, v1")
    a("v_lshl_add_u32 v4, v5, 4, v4")
    a("s_lshl_b32 s17, s16, 13")
    a("s_lshl_b32 s18, s16, 11")
    a("s_add_u32 s18, s18, 0x%x" % WT_OFF)
    a("v_add_u32 v4, s18, v4")
    a("s_waitcnt lgkmcnt(0)")
    a("s_cmp_ge_u32 s16, 2")
    a("s_cselect_b32 s4, s6, s4")
    a("s_cselect_b32 s5, s7, s5")
    a("s_cselect_b32 s19, 0x4000, 0")
    a("s_sub_u32 s17, s17, s19")
    a("v_add_u32 v3, s17, v3")
    a("s_and_saveexec_b64 s[20:21], vcc")
    a("s_cbranch_execz K1_END")
    for i in range(4):
        a("global_load_ushort v%d, v3, s[4:5] offset:%d" % (8 + i, i * 256))
        a("global_load_ushort v%d, v3, s[4:5] offset:%d" % (12 + i, i * 256 + 128))
    a("s_waitcnt vmcnt(0)")
    for i in range(4):
        a("v_lshl_or_b32 v%d, v%d, 16, v%d" % (8 + i, 12 + i, 8 + i))
    a("global_store_dwordx4 v4, v[8:11], s[12:13]")
    a.label("K1_END")
    a("s_endpgm")
    a.label("K1_TABZ")
    a("s_load_dwordx2 s[12:13], s[0:1], 88")
    a("v_cmp_gt_u32 vcc, 256, v0")
    a("v_lshlrev_b32 v1, 10, v0")
    a("v_add_u32 v1, 0x%x, v1" % (TAB_OFF + NCH * 4))
    a("v_mov_b32 v2, 0")
    a("v_mov_b32 v3, 0")
    a("s_waitcnt lgkmcnt(0)")
    a("s_and_saveexec_b64 s[20:21], vcc")
    a("s_cbranch_execz K1_END2")
    for i in range(3):
        a("global_store_dwordx2 v1, v[2:3], s[12:13] offset:%d" % (8 * i))
    a.label("K1_END2")
    a("s_endpgm")
    return lds

def path6(g, l):
    if g == 0 and l == 0: return 0
    if g == l: return 1
    if l == 0: return 2
    if g == 0: return 3
    return 4 if (g, l) in ((2, 3), (3, 1), (1, 2)) else 5

def wmat(o, jp):
    if o == 0:
        return 0 if jp == 0 else 1
    if jp == o: return 2
    if jp == 0: return 3
    return 4

def gen_k2(a, cfg):
    NW = cfg.NW
    assert NW == 12
    CAP = 3072
    L_RAW = 0
    L_SRC = (CAP + 64) * 16
    L_S = L_SRC + 12288
    L_SCR = L_S + NPB * 2048
    L_HIST = L_SCR + NW * 1024
    L_NEXT = L_HIST + 256
    L_MORE = L_HIST + 260
    L_WR = L_HIST + 512
    lds = L_WR + 6144
    ITF = 4
    QCAP = 768 if cfg.FORCE_SLOW else CAP
    sX, sWS, sOUT, sWR = 4, 8, 12, 16
    sWAVE, sROFF, sQ, sB, sMORE, sITEM = 18, 19, 20, 21, 22, 23
    xVALID, xN, xH256, xREM, xRAWA, xSRCA, xFIRST = 24, 25, 26, 27, 28, 29, 30
    xLIM, cN, cH256, cFIRST, cREM = 31, 32, 33, 42, 43
    pN, pH256, pFIRST, pREM = 36, 37, 54, 55
    sT0, sT1, sT2, sT3 = 34, 35, 44, 45
    sKEYOFF, sM32, sHI16, s512 = 38, 39, 40, 41
    sSELLO, sSELHI, sNN, sNN2, sNODE0 = 46, 47, 48, 49, 50
    sSV = 52
    sTOT = 20
    sCK = 56
    vTID, vLANE, vC16, vG16, vSLOT16, vSCRW, vSCRR, vJUNK, vINFO, vCNT, vNEXT, vSW, vONE, vWA0, vWD, vNXA = range(16)
    vF = 16
    vAD = 48
    vPB = 56
    vACC = 88
    vG = 120
    vS = 124
    vR = 128
    vT = 132
    vOA = 144
    vODDM = 160
    vREC = 16
    vKEY = 32
    vRANK = 36
    vTAB = 40
    vPRE = 44
    vLEN = 48
    vDEL = 52
    vM = 56
    vRA = 60
    vREMC, vT0, vT1, vT2, vT3 = range(82, 87)
    vWL = 96

    a.raw(".p2align 8")
    a.raw(".globl main_kernel")
    a.raw(".type main_kernel,@function")
    a.label("main_kernel")
    a("s_cmp_ge_u32 s2, %d" % NB)
    a("s_cbranch_scc1 K2_END")
    stamp(a, cfg, 0)
    a("s_load_dwordx2 %s, s[0:1], 88" % sr(sWS, 2))
    a("s_load_dwordx2 %s, s[0:1], 0" % sr(sX, 2))
    a("s_load_dwordx2 %s, s[0:1], 72" % sr(sOUT, 2))
    a("s_load_dwordx2 %s, s[0:1], 40" % sr(sWR, 2))
    a("s_mov_b32 s%d, 5120000" % (sX + 2))
    a("s_mov_b32 s%d, 0x20000" % (sX + 3))
    a("s_mov_b32 s%d, 0x%x" % (sWS + 2, WS_BYTES))
    a("s_mov_b32 s%d, 0x20000" % (sWS + 3))
    a("s_mov_b32 s%d, 5120000" % (sOUT + 2))
    a("s_mov_b32 s%d, 0x20000" % (sOUT + 3))
    a("s_and_b32 s%d, s2, 7" % sB)
    a("s_lshl_b32 s%d, s%d, 5" % (sB, sB))
    a("s_lshr_b32 s%d, s2, 3" % sT0)
    a("s_add_u32 s%d, s%d, s%d" % (sB, sB, sT0))
    def pf_issue(t2=None, t3=None):
        t2 = vT2 if t2 is None else t2
        t3 = vT3 if t3 is None else t3
        a("s_lshr_b32 s%d, s2, 3" % sT0)
        a("s_mul_i32 s%d, s%d, %d" % (sT0, sT0, 313 * 512))
        a("v_lshrrev_b32 v%d, 1, v0" % t2)
        a("v_lshlrev_b32 v%d, 9, v%d" % (t2, t2))
        a("v_and_b32 v%d, 1, v0" % t3)
        a("v_lshl_add_u32 v%d, v%d, 7, v%d" % (t2, t3, t2))
        a("buffer_load_dword v%d, v%d, %s, s%d offen" % (vJUNK, t2, sr(sX, 4), sT0))
    def tab_load():
        a("v_and_b32 v%d, 63, v0" % vLANE)
        a("v_lshlrev_b32 v%d, 4, v%d" % (vT0, vLANE))
        a("s_lshl_b32 s%d, s%d, 10" % (sT0, sB))
        a("s_add_u32 s%d, s%d, 0x%x" % (sT0, sT0, TAB_OFF))
        a("s_waitcnt lgkmcnt(0)")
        a("buffer_load_dwordx4 %s, v%d, %s, s%d offen" % (vr(vTAB, 4), vT0, sr(sWS, 4), sT0))
    tab_load()
    stamp(a, cfg, 1)
    a("v_lshrrev_b32 v%d, 6, v0" % vT1)
    a("v_lshrrev_b32 v%d, 3, v%d" % (vT2, vLANE))
    a("v_readfirstlane_b32 s%d, v%d" % (sWAVE, vT1))
    a("v_min_u32 v%d, 4, v%d" % (vT3, vT2))
    a("v_lshlrev_b32 v%d, 7, v%d" % (vT3, vT3))
    a("v_and_b32 v%d, 7, v0" % vT0)
    a("v_lshl_add_u32 v%d, v%d, 4, v%d" % (vT3, vT0, vT3))
    a("v_and_b32 v%d, 3, v%d" % (vT1, vT1))
    a("v_mul_u32_u24 v%d, 640, v%d" % (vT1, vT1))
    a("v_add_u32 v%d, v%d, v%d" % (vT3, vT3, vT1))
    a("global_load_dwordx4 %s, v%d, %s" % (vr(vWL, 4), vT3, sr(sWR, 2)))
    a("s_mov_b32 s%d, 0x05040100" % sSELLO)
    a("s_mov_b32 s%d, 0x07060302" % sSELHI)
    a("s_movk_i32 s%d, 512" % s512)
    a("s_mov_b32 s%d, 0x%x" % (sKEYOFF, KEY_OFF))
    a("s_movk_i32 s%d, -32" % sM32)
    a("s_mov_b32 s%d, 0xffff0000" % sHI16)
    a("s_mov_b32 s%d, 0" % sROFF)
    for k in range(1, 4):
        a("s_movk_i32 s%d, %d" % (sCK + k, k * CH))
    a("s_mul_i32 s%d, s%d, 625" % (sNODE0, sB))
    a("s_add_u32 s%d, s%d, %d" % (sNN, sNODE0, 625 + 15))
    a("s_add_u32 s%d, s%d, 15" % (sNODE0, sNODE0))
    a("s_lshr_b32 s%d, s%d, 4" % (sNODE0, sNODE0))
    a("s_lshr_b32 s%d, s%d, 4" % (sNN, sNN))
    a("s_sub_u32 s%d, s%d, s%d" % (sNN, sNN, sNODE0))
    a("s_lshl_b32 s%d, s%d, 1" % (sNN2, sNN))
    a("v_and_b32 v%d, 15, v0" % vC16)
    a("v_lshlrev_b32 v%d, 4, v%d" % (vC16, vC16))
    a("v_and_b32 v%d, 48, v0" % vG16)
    a("v_lshrrev_b32 v%d, 1, v%d" % (vSLOT16, vLANE))
    a("v_lshlrev_b32 v%d, 4, v%d" % (vSLOT16, vSLOT16))
    a("s_lshl_b32 s%d, s%d, 10" % (sT1, sWAVE))
    a("s_add_u32 s%d, s%d, %d" % (sT1, sT1, L_SCR))
    a("v_lshl_add_u32 v%d, v%d, 4, s%d" % (vSCRW, vLANE, sT1))
    a("v_bfe_u32 v%d, v0, 2, 2" % vT1)
    a("v_lshlrev_b32 v%d, 7, v%d" % (vSCRR, vT1))
    a("v_lshl_add_u32 v%d, v%d, 1, v%d" % (vSCRR, vG16, vSCRR))
    a("v_and_b32 v%d, 3, v0" % vT1)
    a("v_lshl_add_u32 v%d, v%d, 3, v%d" % (vSCRR, vT1, vSCRR))
    a("v_add_u32 v%d, s%d, v%d" % (vSCRR, sT1, vSCRR))
    a("v_lshlrev_b32 v%d, 4, v%d" % (vSW, vG16))
    a("v_mov_b32 v%d, 1" % vONE)
    a("v_bfe_i32 v%d, v0, 0, 1" % vODDM)
    a("v_mov_b32 v%d, %d" % (vNXA, L_NEXT))
    K = [0, 0]
    for h in range(2):
        for idx in range(8):
            K[h] |= path6(idx >> 1, 2 * h + (idx & 1)) << (4 * idx)
    a("v_lshlrev_b32 v%d, 2, v%d" % (vT1, vT2))
    a("s_mov_b32 s%d, 0x%x" % (sT0, K[0]))
    a("v_bfe_u32 v%d, s%d, v%d, 3" % (vWA0, sT0, vT1))
    a("s_mov_b32 s%d, 0x%x" % (sT0, K[1]))
    a("v_bfe_u32 v%d, s%d, v%d, 3" % (vWD, sT0, vT1))
    a("v_sub_u32 v%d, v%d, v%d" % (vWD, vWD, vWA0))
    a("v_lshlrev_b32 v%d, 8, v%d" % (vWA0, vWA0))
    a("v_lshl_add_u32 v%d, v%d, 5, v%d" % (vWA0, vT0, vWA0))
    a("v_add_u32 v%d, %d, v%d" % (vWA0, L_WR, vWA0))
    for i in range(16):
        a("v_mov_b32 v%d, 0" % (vOA + i))

    a.label("K2_ROUND")
    a("v_lshlrev_b32 v%d, 4, v0" % vT0)
    for i in range(4):
        a("v_mov_b32 v%d, -1" % (vG + i))
    a("ds_write_b128 v%d, %s offset:%d" % (vT0, vr(vG, 4), L_SRC))
    a("v_lshlrev_b32 v%d, 2, v0" % vT1)
    a("v_add_u32 v%d, %d, v%d" % (vT1, L_HIST, vT1))
    a("v_cmp_eq_u32 vcc, 64, v0")
    a("v_mov_b32 v%d, 0" % vT2)
    a("v_mov_b32 v%d, %d" % (vT3, cfg.GW))
    a("v_cndmask_b32 v%d, v%d, v%d, vcc" % (vT2, vT2, vT3))
    for i in range(4):
        a("v_mov_b32 v%d, 0" % (vS + i))
    a("ds_write_b128 v%d, %s" % (vSCRW, vr(vS, 4)))
    a("v_cmp_gt_u32 vcc, 65, v0")
    a("s_and_saveexec_b64 %s, vcc" % sr(sSV, 2))
    a("s_cbranch_execz K2_INIT1")
    a("ds_write_b32 v%d, v%d" % (vT1, vT2))
    a.label("K2_INIT1")
    a("s_mov_b64 exec, -1")
    a("s_waitcnt lgkmcnt(0)")
    a("s_barrier")
    a("s_waitcnt vmcnt(1)")
    a("s_cmp_eq_u32 s%d, 0" % sROFF)
    a("s_cbranch_scc1 K2_TABOK")
    a("s_waitcnt vmcnt(0)")
    a.label("K2_TABOK")
    stamp(a, cfg, 2)
    if cfg.PF_H0 == 5:
        a("s_cmp_lt_u32 s%d, 10" % sWAVE)
        a("s_cbranch_scc1 K2_NOPF")
        a("s_lshr_b32 s%d, s2, 3" % sT0)
        a("s_mul_i32 s%d, s%d, %d" % (sT0, sT0, 313 * 512))
        a("v_subrev_u32 v%d, 640, v0" % vT2)
        a("v_lshrrev_b32 v%d, 1, v%d" % (vT2, vT2))
        a("v_lshlrev_b32 v%d, 9, v%d" % (vT2, vT2))
        a("v_and_b32 v%d, 1, v0" % vT3)
        a("v_lshl_add_u32 v%d, v%d, 7, v%d" % (vT2, vT3, vT2))
        for i in range(5):
            a("buffer_load_dword v%d, v%d, %s, s%d offen" % (vJUNK, vT2, sr(sX, 4), sT0))
            a("s_add_u32 s%d, s%d, %d" % (sT0, sT0, 64 * 512))
        a.label("K2_NOPF")
    for k in range(4):
        a("v_lshrrev_b32 v%d, 16, v%d" % (vLEN + k, vTAB + k))
    a("v_add_u32 v%d, v%d, v%d" % (vPRE + 2, vLEN + 0, vLEN + 1))
    a("v_add_u32 v%d, v%d, v%d" % (vPRE + 3, vPRE + 2, vLEN + 2))
    a("v_add_u32 v%d, v%d, v%d" % (vT0, vPRE + 3, vLEN + 3))
    a("v_mov_b32 v%d, v%d" % (vPRE, vT0))
    a("v_mul_u32_u24 v%d, %d, v%d" % (vT1, 4 * CH, vLANE))
    scan = ("row_shr:1 row_mask:0xf", "row_shr:2 row_mask:0xf", "row_shr:4 row_mask:0xf",
            "row_shr:8 row_mask:0xf", "row_bcast:15 row_mask:0xa", "row_bcast:31 row_mask:0xc")
    fill = []
    for k in range(4):
        fill.append("v_and_b32 v%d, 0xffff, v%d" % (vDEL + k, vTAB + k))
        fill.append("v_add3_u32 v%d, v%d, v%d, s%d" % (vDEL + k, vDEL + k, vT1, sCK + k) if k else "v_add_u32 v%d, v%d, v%d" % (vDEL, vDEL, vT1))
    fill += ["s_nop 0"] * 4
    a("s_nop 0")
    for i, m in enumerate(scan):
        a("v_add_u32_dpp v%d, v%d, v%d %s bank_mask:0xf" % (vPRE, vPRE, vPRE, m))
        a(fill[2 * i]); a(fill[2 * i + 1])
    a("v_readlane_b32 s%d, v%d, 63" % (sTOT, vPRE))
    a("s_lshl_b32 s%d, s%d, 8" % (sT0, sWAVE))
    a("s_add_u32 s%d, s%d, s%d" % (sT0, sT0, sROFF))
    a("v_sub_u32 v%d, v%d, v%d" % (vPRE, vPRE, vT0))
    a("s_add_u32 s%d, s%d, %d" % (sT1, sROFF, QCAP))
    a("s_cmp_gt_u32 s%d, s%d" % (sTOT, sT1))
    a("s_cselect_b32 s%d, 1, 0" % sMORE)
    a("s_min_u32 s%d, s%d, s%d" % (sT1, sT1, sTOT))
    a("s_sub_i32 s%d, s%d, s%d" % (sT1, sT1, sT0))
    a("v_sub_u32 v%d, s%d, v%d" % (vREMC, sT1, vLANE))
    a("s_cmp_le_i32 s%d, 0" % sT1)
    a("s_cbranch_scc1 K2_LDDONE")
    a("v_add_u32 v%d, v%d, v%d" % (vPRE + 1, vPRE, vLEN + 0))
    a("v_add_u32 v%d, v%d, v%d" % (vPRE + 2, vPRE, vPRE + 2))
    a("v_add_u32 v%d, v%d, v%d" % (vPRE + 3, vPRE, vPRE + 3))
    a("s_lshl_b32 s%d, s%d, 10" % (sT2, sWAVE))
    a("s_add_u32 s%d, s%d, %d" % (sT2, sT2, L_SCR))
    for k in range(4):
        a("v_sub_u32 v%d, v%d, v%d" % (vDEL + k, vDEL + k, vPRE + k))
        a("v_subrev_u32 v%d, s%d, v%d" % (vPRE + k, sT0, vPRE + k))
        a("v_add_u32 v%d, v%d, v%d" % (vLEN + k, vLEN + k, vPRE + k))
        a("v_max_i32 v%d, 0, v%d" % (vT2, vPRE + k))
        a("v_lshl_add_u32 v%d, v%d, 2, s%d" % (vT2, vT2, sT2))
        a("v_cmpx_lt_i32 vcc, 0, v%d" % (vLEN + k))
        a("v_cmpx_gt_i32 vcc, 256, v%d" % (vPRE + k))
        a("ds_max_u32 v%d, v%d" % (vT2, vDEL + k))
        a("s_mov_b64 exec, -1")
    a("v_lshl_add_u32 v%d, v%d, 2, s%d" % (vT2, vLANE, sT2))
    a("ds_read2st64_b32 %s, v%d offset0:0 offset1:1" % (vr(vM, 2), vT2))
    a("ds_read2st64_b32 %s, v%d offset0:2 offset1:3" % (vr(vM + 2, 2), vT2))
    a("v_add_u32 v%d, s%d, v%d" % (vT3, sT0, vLANE))
    a("s_waitcnt lgkmcnt(0)")
    for m in scan:
        for i in range(4):
            a("v_max_u32_dpp v%d, v%d, v%d %s bank_mask:0xf" % (vM + i, vM + i, vM + i, m))
    a("v_readlane_b32 s%d, v%d, 63" % (sT0, vM + 0))
    a("v_readlane_b32 s%d, v%d, 63" % (sT1, vM + 1))
    a("v_readlane_b32 s%d, v%d, 63" % (sT2, vM + 2))
    a("v_add_u32 v%d, v%d, v%d" % (vM + 0, vM + 0, vT3))
    a("s_max_u32 s%d, s%d, s%d" % (sT1, sT1, sT0))
    a("s_max_u32 s%d, s%d, s%d" % (sT2, sT2, sT1))
    a("v_max_u32 v%d, s%d, v%d" % (vM + 1, sT0, vM + 1))
    a("v_max_u32 v%d, s%d, v%d" % (vM + 2, sT1, vM + 2))
    a("v_max_u32 v%d, s%d, v%d" % (vM + 3, sT2, vM + 3))
    for i in range(1, 4):
        a("v_add_u32 v%d, v%d, v%d" % (vM + i, vM + i, vT3))
    for i in range(4):
        a("v_lshlrev_b32 v%d, 4, v%d" % (vRA + i, vM + i))
    for it in range(ITF):
        a("v_cmpx_lt_i32 vcc, %d, v%d" % (64 * it, vREMC))
        a("s_cbranch_execz K2_LDDONE")
        a("buffer_load_ubyte v%d, v%d, %s, s%d offen offset:%d" % (vKEY + it, vM + it, sr(sWS, 4), sKEYOFF, 64 * it))
        a("buffer_load_dwordx4 %s, v%d, %s, 0 offen offset:%d" % (vr(vREC + 4 * it, 4), vRA + it, sr(sWS, 4), 1024 * it))
    a.label("K2_LDDONE")
    a("s_mov_b64 exec, -1")
    npf = 0
    if cfg.PF_H0 == 1:
        pf_issue()
        npf = 1
    a("s_waitcnt vmcnt(%d)" % npf)
    stamp(a, cfg, 3)
    if cfg.PF_H0 == 2:
        a("s_cmp_ge_u32 s%d, 10" % sWAVE)
        a("s_cbranch_scc1 K2_NOPF")
        pf_issue()
        a.label("K2_NOPF")
    a("v_mov_b32 v%d, %d" % (vT3, L_HIST))
    for it in range(ITF):
        a("v_cmpx_lt_i32 vcc, %d, v%d" % (64 * it, vREMC))
        a("s_cbranch_execz K2_RKDONE")
        a("v_lshlrev_b32 v%d, 2, v%d" % (vKEY + it, vKEY + it))
        a("v_add_u32 v%d, v%d, v%d" % (vT2, vT3, vKEY + it))
        a("ds_add_rtn_u32 v%d, v%d, v%d" % (vRANK + it, vT2, vONE))
    a.label("K2_RKDONE")
    a("s_mov_b64 exec, -1")
    a("s_cmp_lg_u32 s%d, 0" % sROFF)
    a("s_cbranch_scc1 K2_NOWR")
    a("s_cmp_ge_u32 s%d, 4" % sWAVE)
    a("s_cbranch_scc1 K2_NOWR")
    a("v_cmp_le_u32 vcc, 40, v%d" % vLANE)
    a("s_mul_i32 s%d, s%d, 1536" % (sT0, sWAVE))
    a("s_add_u32 s%d, s%d, %d" % (sT0, sT0, L_WR))
    a("v_mov_b32 v%d, 0x80008000" % vT2)
    a("v_cndmask_b32 v%d, 0, v%d, vcc" % (vT2, vT2))
    a("v_lshl_add_u32 v%d, v%d, 5, s%d" % (vT3, vLANE, sT0))
    for q in range(4):
        a("v_xor_b32 v%d, v%d, v%d" % (vT0, vT2, vWL + q))
        a("v_lshlrev_b32 v%d, 16, v%d" % (vWL + 4 + 2 * q, vT0))
        a("v_and_b32 v%d, s%d, v%d" % (vWL + 5 + 2 * q, sHI16, vT0))
    a("s_mov_b32 exec_hi, 0xffff")
    a("ds_write_b128 v%d, %s" % (vT3, vr(vWL + 4, 4)))
    a("ds_write_b128 v%d, %s offset:16" % (vT3, vr(vWL + 8, 4)))
    a("s_mov_b64 exec, -1")
    a.label("K2_NOWR")
    a("v_lshlrev_b32 v%d, 2, v%d" % (vT0, vLANE))
    a("v_add_u32 v%d, %d, v%d" % (vT0, L_HIST, vT0))
    a("s_waitcnt lgkmcnt(0)")
    a("s_barrier")
    stamp(a, cfg, 4)
    if cfg.PF_H0 == 3:
        a("s_cmp_ge_u32 s%d, 10" % sWAVE)
        a("s_cbranch_scc1 K2_NOPF")
        pf_issue()
        a.label("K2_NOPF")
    a("ds_read_b32 v%d, v%d" % (vCNT, vT0))
    a("s_waitcnt lgkmcnt(0)")
    a("v_add_u32 v%d, 31, v%d" % (vT0, vCNT))
    a("v_and_b32 v%d, s%d, v%d" % (vT0, sM32, vT0))
    a("v_lshl_or_b32 v%d, v%d, 16, v%d" % (vT0, vT0, vCNT))
    a("v_add_u32 v%d, 1, v%d" % (vT0, vT0))
    a("v_mov_b32 v%d, v%d" % (vINFO, vT0))
    wave_scan(a, vINFO)
    a("v_sub_u32 v%d, v%d, v%d" % (vINFO, vINFO, vT0))
    for it in range(ITF):
        a("v_cmp_lt_i32 vcc, %d, v%d" % (64 * it, vREMC))
        a("s_cbranch_vccz K2_BPDONE")
        a("ds_bpermute_b32 v%d, v%d, v%d" % (vKEY + it, vKEY + it, vINFO))
    a.label("K2_BPDONE")
    a("s_cmp_lg_u32 s%d, 11" % sWAVE)
    a("s_cbranch_scc1 K2_NOZR")
    a("v_and_b32 v%d, 0xffff, v%d" % (vT0, vINFO))
    a("v_add_lshl_u32 v%d, v%d, v%d, 4" % (vT0, vT0, vCNT))
    for i in range(4):
        a("v_mov_b32 v%d, 0" % (vG + i))
    a("ds_write_b128 v%d, %s offset:%d" % (vT0, vr(vG, 4), L_RAW))
    a.label("K2_NOZR")
    a("v_mov_b32 v%d, 0x3f80" % vT3)
    a("s_waitcnt lgkmcnt(0)")
    for it in range(ITF):
        k, p = vKEY + it, vRANK + it
        a("v_cmpx_lt_i32 vcc, %d, v%d" % (64 * it, vREMC))
        a("s_cbranch_execz K2_WRDONE")
        a("v_bfe_u32 v%d, v%d, 2, 3" % (vT1, p))
        a("v_and_b32 v%d, 3, v%d" % (vT2, p))
        a("v_lshl_or_b32 v%d, v%d, 3, v%d" % (vT1, vT2, vT1))
        a("v_and_or_b32 v%d, v%d, s%d, v%d" % (vT1, p, sM32, vT1))
        a("v_lshrrev_b32 v%d, 16, v%d" % (vT2, k))
        a("v_add_lshl_u32 v%d, v%d, v%d, 1" % (vT1, vT1, vT2))
        a("ds_write_b16 v%d, v%d offset:%d" % (vT1, vREC + 4 * it + 2, L_SRC))
        a("v_and_b32 v%d, 0xffff, v%d" % (vT0, k))
        a("v_add_lshl_u32 v%d, v%d, v%d, 4" % (vT0, vT0, p))
        a("v_bfi_b32 v%d, s%d, v%d, v%d" % (vREC + 4 * it + 2, sHI16, vREC + 4 * it + 2, vT3))
        a("ds_write_b128 v%d, %s offset:%d" % (vT0, vr(vREC + 4 * it, 4), L_RAW))
    a.label("K2_WRDONE")
    a("s_mov_b64 exec, -1")
    a("s_mov_b32 s%d, s%d" % (sITEM, sWAVE))
    a("s_mov_b32 s%d, 1" % xVALID)
    a("s_mov_b32 s%d, 64" % cREM)
    a("s_mov_b32 s%d, 1" % cFIRST)

    def claim(tag):
        a("s_cmp_gt_i32 s%d, 32" % xREM)
        a("s_cbranch_scc1 K2_NOCLAIM%s" % tag)
        a("s_mov_b64 exec, 1")
        a("ds_add_rtn_u32 v%d, v%d, v%d" % (vNEXT, vNXA, vONE))
        a("s_mov_b64 exec, -1")
        a.label("K2_NOCLAIM%s" % tag)
    def new_item():
        a("s_cmp_ge_u32 s%d, s%d" % (sITEM, sNN))
        a("s_cselect_b32 s%d, 256, 0" % xH256)
        a("s_cselect_b32 s%d, s%d, 0" % (sT0, sNN))
        a("s_sub_u32 s%d, s%d, s%d" % (xN, sITEM, sT0))
        a("v_readlane_b32 s%d, v%d, s%d" % (sT1, vINFO, xN))
        a("v_readlane_b32 s%d, v%d, s%d" % (xREM, vCNT, xN))
        a("s_and_b32 s%d, s%d, 0xffff" % (xRAWA, sT1))
        a("s_add_u32 s%d, s%d, s%d" % (xLIM, xRAWA, xREM))
        a("s_lshl_b32 s%d, s%d, 4" % (xRAWA, xRAWA))
        a("s_lshl_b32 s%d, s%d, 4" % (xLIM, xLIM))
        a("s_lshr_b32 s%d, s%d, 16" % (xSRCA, sT1))
        a("s_lshl_b32 s%d, s%d, 1" % (xSRCA, xSRCA))
        a("s_mov_b32 s%d, 1" % xFIRST)
    def read_s():
        a("v_add_u32 v%d, s%d, v%d" % (vT + 10, xSRCA, vG16))
        a("ds_read_b128 %s, v%d offset:%d" % (vr(vS, 4), vT + 10, L_SRC))
    def read_r():
        a("v_add_u32 v%d, s%d, v%d" % (vT + 11, xRAWA, vSLOT16))
        a("v_min_u32 v%d, s%d, v%d" % (vT + 11, xLIM, vT + 11))
        a("ds_read_b128 %s, v%d offset:%d" % (vr(vR, 4), vT + 11, L_RAW))
    def mads():
        if cfg.ABL & 32:
            for q in range(4):
                a("v_and_b32 v%d, 0x07ff07ff, v%d" % (vS + q, vS + q))
        for i in range(8):
            a("v_mad_u32_u16 v%d, v%d, s%d, v%d%s" % (vAD + i, vS + (i >> 1), s512, vC16, " op_sel:[1,0,0,0]" if i & 1 else ""))
    def mfmas(tag):
        a("s_cmp_eq_u32 s%d, 0" % cFIRST)
        a("s_cbranch_scc1 K2_MFACC%s" % tag)
        for j in range(8):
            a("v_mfma_f32_16x16x32_bf16 %s, %s, %s, 0" % (vr(vACC + 4 * j, 4), vr(vG, 4), vr(vPB + 4 * j, 4)))
        a("s_branch K2_MFDONE%s" % tag)
        a.label("K2_MFACC%s" % tag)
        for j in range(8):
            a("v_mfma_f32_16x16x32_bf16 %s, %s, %s, %s" % (vr(vACC + 4 * j, 4), vr(vG, 4), vr(vPB + 4 * j, 4), vr(vACC + 4 * j, 4)))
        a.label("K2_MFDONE%s" % tag)
    def epi_reads():
        a("v_mad_i32_i24 v%d, v%d, s%d, v%d" % (vT + 10, vWD, cH256, vWA0))
        for d in range(4):
            a("ds_read_b128 %s, v%d offset:%d" % (vr(vPB + 8 * d, 4), vT + 10, d * 1536))
            a("ds_read_b128 %s, v%d offset:%d" % (vr(vPB + 8 * d + 4, 4), vT + 10, d * 1536 + 16))
    def epi(nyounger):
        a("s_and_b32 s%d, s%d, 15" % (sT0, cN))
        a("s_lshl_b32 s%d, s%d, 4" % (sT0, sT0))
        a("s_lshl_b32 s%d, s%d, 11" % (sT1, cN))
        a("s_lshl_b32 s%d, s%d, 2" % (sT2, cH256))
        a("s_add_u32 s%d, s%d, s%d" % (sT1, sT1, sT2))
        a("v_xor_b32 v%d, s%d, v%d" % (vT + 10, sT0, vC16))
        a("v_add3_u32 v%d, v%d, v%d, s%d" % (vT + 10, vT + 10, vSW, sT1))
        a("s_waitcnt lgkmcnt(%d)" % nyounger)
        for d in range(4):
            for j in range(8):
                op = "v_mul_f32" if d == 0 else "v_fmac_f32"
                a("%s v%d, v%d, v%d" % (op, vT + j, vACC + 4 * j + d, vPB + 8 * d + j))
        for q in range(4):
            a("v_cvt_pk_bf16_f32 v%d, v%d, v%d" % (vS + q, vT + 2 * q, vT + 2 * q + 1))
        a("ds_write_b128 v%d, %s offset:%d" % (vT + 10, vr(vS, 4), L_S))

    a("s_waitcnt lgkmcnt(0)")
    a("s_barrier")
    stamp(a, cfg, 5)
    if cfg.TS:
        a("s_memtime %s" % sr(TSB + 20, 2))
        a("s_mov_b32 s%d, 0" % (TSB + 24))
    if cfg.GW < NW:
        a("s_cmp_ge_u32 s%d, %d" % (sWAVE, cfg.GW))
        a("s_cbranch_scc1 K2_TAIL")
    new_item()
    claim("P")
    read_s()
    read_r()
    a("s_waitcnt lgkmcnt(0)")
    mads()
    a("s_branch K2_ISSUE")

    def perm_block(p):
        for j in range(8):
            q, sel = j >> 1, (sSELHI if j & 1 else sSELLO)
            a("v_perm_b32 v%d, v%d, v%d, s%d" % (vPB + 4 * j + p, vF + 4 * (2 * p + 1) + q, vF + 4 * (2 * p) + q, sel))
    a.label("K2_TOP")
    if cfg.V1:
        a("s_cmp_le_i32 s%d, 28" % cREM)
        a("s_cbranch_scc1 K2_OLD")
        a("s_cmp_eq_u32 s%d, 0" % xVALID)
        a("s_cbranch_scc1 K2_OLD")
        for p in range(4):
            a("s_waitcnt vmcnt(6)")
            perm_block(p)
            for i in (2 * p, 2 * p + 1):
                a("s_cmp_le_i32 s%d, %d" % (xREM, 4 * i))
                a("s_cbranch_scc1 K2_X%d" % i)
                a("buffer_load_dwordx4 %s, v%d, %s, s%d offen" % (vr(vF + 4 * i, 4), vAD + i, sr(sX, 4), xH256))
        a.label("K2_V1DONE")
        a("s_waitcnt lgkmcnt(0)")
        a("s_branch K2_ISSUED")
        for i in range(8):
            a.label("K2_X%d" % i)
            if i & 1:
                for q in range(4):
                    a("v_mov_b32 v%d, 0" % (vF + 4 * i + q))
            if i >= 6:
                a("s_branch K2_V1DONE")
            else:
                a("s_waitcnt vmcnt(%d)" % i)
                a("s_branch K2_C%d" % (i // 2 + 1))
        for p in range(1, 4):
            a.label("K2_C%d" % p)
            perm_block(p)
        a("s_branch K2_V1DONE")
        a.label("K2_OLD")
    a("s_waitcnt vmcnt(0) lgkmcnt(0)")
    for p in range(4):
        if cfg.ABL & 1: break
        a("s_cmp_le_i32 s%d, %d" % (cREM, 8 * p))
        a("s_cbranch_scc1 K2_PZ%d" % p)
        for j in range(8):
            q, sel = j >> 1, (sSELHI if j & 1 else sSELLO)
            a("v_perm_b32 v%d, v%d, v%d, s%d" % (vPB + 4 * j + p, vF + 4 * (2 * p + 1) + q, vF + 4 * (2 * p) + q, sel))
    a.label("K2_ISSUE")
    a("s_cmp_eq_u32 s%d, 0" % xVALID)
    a("s_cbranch_scc1 K2_TAIL")
    for i in range(8):
        a("s_cmp_le_i32 s%d, %d" % (xREM, 4 * i))
        a("s_cbranch_scc1 %s" % ("K2_Z%d" % i if i & 1 else "K2_ISSUED"))
        a("buffer_load_dwordx4 %s, v%d, %s, s%d offen" % (vr(vF + 4 * i, 4), vAD + i, sr(sX, 4), xH256))
    a.label("K2_ISSUED")
    if cfg.TS:
        a("s_add_u32 s%d, s%d, 1" % (TSB + 24, TSB + 24))
    a("s_mov_b32 s%d, s%d" % (pN, xN))
    a("s_mov_b32 s%d, s%d" % (pH256, xH256))
    a("s_mov_b32 s%d, s%d" % (pFIRST, xFIRST))
    a("s_mov_b32 s%d, s%d" % (pREM, xREM))
    a("s_cmp_gt_i32 s%d, 32" % xREM)
    a("s_cbranch_scc0 K2_NEWITEM")
    a("s_sub_i32 s%d, s%d, 32" % (xREM, xREM))
    a("s_add_u32 s%d, s%d, 512" % (xRAWA, xRAWA))
    a("s_add_u32 s%d, s%d, 64" % (xSRCA, xSRCA))
    a("s_mov_b32 s%d, 0" % xFIRST)
    a.label("K2_HAVE")
    read_s()
    if not cfg.ABL & 2: mfmas("")
    a("s_waitcnt lgkmcnt(0)")
    mads()
    a("s_cmp_gt_i32 s%d, 32" % cREM)
    a("s_cbranch_scc1 K2_NOER")
    if not cfg.ABL & 8: epi_reads()
    a.label("K2_NOER")
    if cfg.ABL & 4: a("s_branch K2_ABL4")
    e = vT
    ya = vT + 4
    pr = vT + 6
    a("v_bfi_b32 v%d, v%d, v%d, v%d" % (ya + 1, vODDM, vR + 3, vR + 2))
    a("v_lshlrev_b32 v%d, 16, v%d" % (e + 0, vR + 0))
    a("v_and_b32 v%d, s%d, v%d" % (e + 1, sHI16, vR + 0))
    a("v_lshlrev_b32 v%d, 16, v%d" % (ya, ya + 1))
    a("v_lshlrev_b32 v%d, 16, v%d" % (e + 2, vR + 1))
    a("v_and_b32 v%d, s%d, v%d" % (e + 3, sHI16, vR + 1))
    a("v_and_b32 v%d, s%d, v%d" % (ya + 1, sHI16, ya + 1))
    for hh in range(2):
        for d in range(4):
            a("v_mul_f32 v%d, v%d, v%d" % (pr + d, e + d, ya + hh))
        a("v_cvt_pk_bf16_f32 v%d, v%d, v%d" % (vR + 2 * hh, pr, pr + 1))
        a("v_cvt_pk_bf16_f32 v%d, v%d, v%d" % (vR + 2 * hh + 1, pr + 2, pr + 3))
    a("ds_write_b128 v%d, %s" % (vSCRW, vr(vR, 4)))
    a("ds_read_b64_tr_b16 %s, v%d" % (vr(vG, 2), vSCRR))
    a("ds_read_b64_tr_b16 %s, v%d offset:512" % (vr(vG + 2, 2), vSCRR))
    a.label("K2_ABL4")
    read_r()
    a("s_cmp_gt_i32 s%d, 32" % cREM)
    a("s_cbranch_scc1 K2_NOEPI")
    if not cfg.ABL & 8: epi(1 if cfg.ABL & 4 else 4)
    a.label("K2_NOEPI")
    claim("")
    a("s_mov_b32 s%d, s%d" % (cN, pN))
    a("s_mov_b32 s%d, s%d" % (cH256, pH256))
    a("s_mov_b32 s%d, s%d" % (cFIRST, pFIRST))
    a("s_mov_b32 s%d, s%d" % (cREM, pREM))
    a("s_branch K2_TOP")
    a.label("K2_NEWITEM")
    a("v_readfirstlane_b32 s%d, v%d" % (sITEM, vNEXT))
    a("s_cmp_lt_u32 s%d, s%d" % (sITEM, sNN2))
    a("s_cselect_b32 s%d, 1, 0" % xVALID)
    a("s_cbranch_scc0 K2_HAVE")
    new_item()
    a("s_branch K2_HAVE")
    for i in (1, 3, 5, 7):
        a.label("K2_Z%d" % i)
        for q in range(4):
            a("v_mov_b32 v%d, 0" % (vF + 4 * i + q))
        a("s_branch K2_ISSUED")
    for p in range(4):
        a.label("K2_PZ%d" % p)
        for j in range(8):
            a("v_mov_b32 v%d, 0" % (vPB + 4 * j + p))
    a("s_branch K2_ISSUE")
    a.label("K2_TAIL")
    vWT = vF
    a("v_lshlrev_b32 v%d, 4, v%d" % (vT + 0, vLANE))
    a("s_and_b32 s%d, s%d, 3" % (sT0, sWAVE))
    a("s_mul_i32 s%d, s%d, 10240" % (sT0, sT0))
    a("s_add_u32 s%d, s%d, 0x%x" % (sT0, sT0, WT_OFF))
    for fi in range(10):
        if cfg.ABL & 16: break
        a("buffer_load_dwordx4 %s, v%d, %s, s%d offen offset:%d" % (vr(vWT + 4 * fi, 4), vT + 0, sr(sWS, 4), sT0, (fi & 3) * 1024))
        if fi & 3 == 3:
            a("s_add_u32 s%d, s%d, 4096" % (sT0, sT0))
    if cfg.GW < NW:
        a("s_cmp_ge_u32 s%d, %d" % (sWAVE, cfg.GW))
        a("s_cbranch_scc1 K2_MAINDONE")
    mfmas("T")
    epi_reads()
    epi(0)
    a.label("K2_MAINDONE")

    stamp(a, cfg, 6)
    vB = vPB
    vA4 = vT
    vU0, vU1, vU2 = vT + 4, vT + 5, vT + 6
    sMT, sNT = sT2, sT3
    a("s_lshr_b32 s%d, s%d, 2" % (sMT, sWAVE))
    a("s_and_b32 s%d, s%d, 3" % (sNT, sWAVE))
    a("v_xor_b32 v%d, v%d, v%d" % (vU1, vG16, vC16))
    a("v_lshlrev_b32 v%d, 7, v%d" % (vU2, vC16))
    a("s_lshl_b32 s%d, s%d, 15" % (sT0, sMT))
    a("s_add_u32 s%d, s%d, %d" % (sT0, sT0, L_S))
    a("s_waitcnt lgkmcnt(0)")
    for cmb in range(4):
        a("v_xor_b32 v%d, %d, v%d" % (vA4 + cmb, cmb * 64, vU1))
        a("v_add3_u32 v%d, v%d, v%d, s%d" % (vA4 + cmb, vA4 + cmb, vU2, sT0))
    a("s_barrier")
    stamp(a, cfg, 7)
    if cfg.TS:
        a("s_memtime %s" % sr(TSB + 22, 2))
    for half in range(2):
        seq = []
        for o in (2 * half, 2 * half + 1):
            for jp in range(4):
                for ch in range(2):
                    seq.append((o, jp, ch))
        for idx, (o, jp, ch) in enumerate(seq):
            l = jp ^ o
            if idx == 15:
                a("s_waitcnt lgkmcnt(14)")
            a("ds_read_b128 %s, v%d offset:%d" % (vr(vB + 4 * idx, 4), vA4 + (l & 1) * 2 + ch, (l >> 1) * 1024 + jp * 256))
        if half == 0:
            a("s_waitcnt vmcnt(0)")
        for idx, (o, jp, ch) in enumerate(seq):
            a("s_waitcnt lgkmcnt(%d)" % (15 - idx))
            a("v_mfma_f32_16x16x32_bf16 %s, %s, %s, %s" % (vr(vOA + 4 * o, 4), vr(vWT + 8 * wmat(o, jp) + 4 * ch, 4), vr(vB + 4 * idx, 4), vr(vOA + 4 * o, 4)))
    a("s_cmp_eq_u32 s%d, 0" % sMORE)
    a("s_cbranch_scc1 K2_FINAL")
    a("s_add_u32 s%d, s%d, %d" % (sROFF, sROFF, QCAP))
    tab_load()
    a("s_branch K2_ROUND")
    a.label("K2_FINAL")
    a("s_mul_i32 s%d, s%d, %d" % (sT0, sMT, 16 * 528))
    a("s_lshl_b32 s%d, s%d, 5" % (sT1, sNT))
    a("s_add_u32 s%d, s%d, s%d" % (sT0, sT0, sT1))
    a("v_mul_u32_u24 v%d, 33, v%d" % (vU0, vC16))
    a("v_lshrrev_b32 v%d, 1, v%d" % (vU1, vG16))
    a("v_add3_u32 v%d, v%d, v%d, s%d" % (vU0, vU0, vU1, sT0))
    a("v_lshrrev_b32 v%d, 5, v0" % vU1)
    a("v_and_b32 v%d, 31, v0" % vU2)
    a("v_mul_u32_u24 v%d, 528, v%d" % (vA4, vU1))
    a("v_lshl_add_u32 v%d, v%d, 4, v%d" % (vA4, vU2, vA4))
    a("v_lshlrev_b32 v%d, 4, v0" % (vA4 + 1))
    a("s_mov_b32 s%d, 0xbfb8aa3b" % sT0)
    vE = vF
    for r in range(4):
        a("v_mul_f32 v%d, s%d, v%d" % (vE + r, sT0, vOA + r))
    for r in range(4):
        a("v_exp_f32 v%d, v%d" % (vE + r, vE + r))
    for r in range(4):
        a("v_add_f32 v%d, 1.0, v%d" % (vE + r, vE + r))
    for r in range(4):
        a("v_rcp_f32 v%d, v%d" % (vE + r, vE + r))
    a("v_cvt_pk_bf16_f32 v%d, v%d, v%d" % (vE + 8, vOA + 0, vOA + 1))
    a("v_cvt_pk_bf16_f32 v%d, v%d, v%d" % (vE + 9, vOA + 2, vOA + 3))
    for o in range(1, 4):
        for r in range(4):
            a("v_mul_f32 v%d, v%d, v%d" % (vOA + 4 * o + r, vOA + 4 * o + r, vE + r))
        a("v_cvt_pk_bf16_f32 v%d, v%d, v%d" % (vE + 8 + 2 * o, vOA + 4 * o, vOA + 4 * o + 1))
        a("v_cvt_pk_bf16_f32 v%d, v%d, v%d" % (vE + 9 + 2 * o, vOA + 4 * o + 2, vOA + 4 * o + 3))
    for o in range(4):
        a("ds_write_b64 v%d, %s offset:%d" % (vU0, vr(vE + 8 + 2 * o, 2), o * 128))
    a("s_lshl_b32 s%d, s%d, 9" % (sT0, sNODE0))
    a("s_add_u32 s%d, s%d, s%d" % (sOUT, sOUT, sT0))
    a("s_addc_u32 s%d, s%d, 0" % (sOUT + 1, sOUT + 1))
    a("s_lshl_b32 s%d, s%d, 9" % (sOUT + 2, sNN))
    a("v_add_u32 v%d, %d, v%d" % (vA4 + 2, 768 * 16, vA4 + 1))
    a("s_waitcnt lgkmcnt(0)")
    a("s_barrier")
    a("ds_read_b128 %s, v%d" % (vr(vE, 4), vA4))
    a("s_cmp_ge_u32 s%d, 8" % sWAVE)
    a("s_cbranch_scc1 K2_ST1")
    a("ds_read_b128 %s, v%d offset:%d" % (vr(vE + 4, 4), vA4, 24 * 528))
    a("s_waitcnt lgkmcnt(0)")
    a("buffer_store_dwordx4 %s, v%d, %s, 0 offen" % (vr(vE + 4, 4), vA4 + 2, sr(sOUT, 4)))
    a.label("K2_ST1")
    a("s_waitcnt lgkmcnt(0)")
    a("buffer_store_dwordx4 %s, v%d, %s, 0 offen" % (vr(vE, 4), vA4 + 1, sr(sOUT, 4)))
    a.label("K2_STDONE")
    if cfg.TS:
        stamp(a, cfg, 8)
        a("s_waitcnt vmcnt(0)")
        stamp(a, cfg, 9)
        stamp_flush(a, cfg, 1, 13, sWS, 161, 162, sT0)
    a.label("K2_END")
    a("s_endpgm")
    return lds

def kd(name, vgpr, sgpr):
    acc = (vgpr + 3) // 4 * 4
    return """.p2align 6
.amdhsa_kernel %s
  .amdhsa_next_free_vgpr %d
  .amdhsa_next_free_sgpr %d
  .amdhsa_accum_offset %d
  .amdhsa_group_segment_fixed_size 0
  .amdhsa_kernarg_size 96
  .amdhsa_user_sgpr_count 2
  .amdhsa_user_sgpr_kernarg_segment_ptr 1
  .amdhsa_system_sgpr_workgroup_id_x 1
  .amdhsa_float_denorm_mode_32 3
.end_amdhsa_kernel
""" % (name, vgpr, sgpr, acc)

def build(cfg):
    a = Asm()
    lds1 = gen_k1(a, cfg)
    lds2 = gen_k2(a, cfg)
    hdr = open("cdna_kernels/%s.s.ref" % NAME).read().split("\n")
    head = [l for l in hdr if l.startswith(";") and "@launch" not in l and "Override" not in l and "grid=ceil" not in l]
    out = "\n".join(head) + "\n"
    out += "; @launch kernel=bin_kernel grid=(256,1,1) block=(640,1,1) lds=%d\n" % lds1
    out += "; @launch kernel=main_kernel grid=(%d,1,1) block=(%d,1,1) lds=%d\n" % (NB, cfg.NW * 64, lds2)
    out += '.amdgcn_target "amdgcn-amd-amdhsa--gfx950"\n.text\n'
    out += a.text()
    out += '.section .rodata,"a"\n'
    out += kd("bin_kernel", 64, 90 if cfg.TS else 32)
    out += kd("main_kernel", 164, 96 if cfg.TS else 60)
    return out

if __name__ == "__main__":
    cfg = Cfg()
    outp = "cdna_kernels/%s.s" % NAME
    for arg in sys.argv[1:]:
        if "=" in arg:
            k, v = arg.split("=")
            assert hasattr(cfg, k), k
            setattr(cfg, k, int(v))
        else:
            outp = arg
    open(outp, "w").write(build(cfg))
    print("wrote", outp)
```

```python
import sys
src, out, nw = sys.argv[1], sys.argv[2], 12
TS_OFF = 0xB00000
s = open(src).read()
L = []
a = L.append
a(".p2align 8"); a(".globl dump_kernel"); a(".type dump_kernel,@function"); a("dump_kernel:")
a("s_cmp_ge_u32 s2, 1"); a("s_cbranch_scc1 D_END")
a("s_load_dwordx2 s[4:5], s[0:1], 88"); a("s_load_dwordx2 s[6:7], s[0:1], 80")
a("v_min_u32 v1, 249, v0"); a("v_lshlrev_b32 v1, 10, v1")
a("v_add_u32 v2, 0x%x, v1" % TS_OFF); a("v_add_u32 v3, 0x%x, v1" % (TS_OFF + 0x40000))
a("v_lshlrev_b32 v4, 2, v0"); a("v_mov_b32 v5, 0"); a("ds_write_b32 v4, v5")
a("v_mov_b32 v4, 0")
a("s_waitcnt lgkmcnt(0)"); a("s_barrier")

items = [(0, 0, 1), (0, 2, 0), (0, 4, 0), (0, 5, 0), (0, 6, 0), (1, 0, 1), (1, 1, 0), (1, 2, 0), (1, 3, 0), (1, 4, 0), (1, 5, 0), (1, 6, 1), (1, 6, 0), (1, 7, 1), (1, 7, 0), (1, 9, 0)]
for slot, (k, idx, mn) in enumerate(items):
    n = 10 if k == 0 else nw
    for w in range(n):
        a("global_load_dword v%d, v%d, s[4:5] offset:%d" % (10 + w, 2 + k, w * 64 + idx * 4))
    a("s_waitcnt vmcnt(0)")
    for w in range(1, n):
        a("%s v10, v10, v%d" % ("v_min_u32" if mn else "v_max_u32", 10 + w))
    if mn: a("v_not_b32 v10, v10")
    a("ds_max_u32 v4, v10 offset:%d" % (slot * 4))
a("s_waitcnt lgkmcnt(0)"); a("s_barrier")
a("v_and_b32 v6, 15, v0"); a("v_lshlrev_b32 v6, 2, v6")
a("ds_read_b32 v7, v6"); a("ds_read_b32 v8, v4")
mask = sum(1 << i for i, it in enumerate(items) if it[2])
a("s_mov_b32 s8, 0x%x" % mask); a("v_and_b32 v9, 15, v0"); a("v_bfe_i32 v9, s8, v9, 1")
a("s_waitcnt lgkmcnt(0)")
a("v_xor_b32 v7, v7, v9"); a("v_not_b32 v8, v8"); a("v_sub_u32 v7, v7, v8")
a("global_store_dword v6, v7, s[6:7]")
a("D_END:"); a("s_endpgm")
code = "\n".join(("    " + x if not (x.endswith(":") or x.startswith(".")) else x) for x in L) + "\n"
s = s.replace('.section .rodata,"a"\n', code + '''.section .rodata,"a"
.p2align 6
.amdhsa_kernel dump_kernel
  .amdhsa_next_free_vgpr 32
  .amdhsa_next_free_sgpr 16
  .amdhsa_accum_offset 32
  .amdhsa_group_segment_fixed_size 0
  .amdhsa_kernarg_size 96
  .amdhsa_user_sgpr_count 2
  .amdhsa_user_sgpr_kernarg_segment_ptr 1
  .amdhsa_system_sgpr_workgroup_id_x 1
.end_amdhsa_kernel
''')
s = s.replace('.amdgcn_target', '; @launch kernel=dump_kernel grid=(1,1,1) block=(256,1,1) lds=1024\n.amdgcn_target', 1)
open(out, "w").write(s)
```

```python
import sys, re
src, out, idx, nw = sys.argv[1], sys.argv[2], int(sys.argv[3]), int(sys.argv[4]) if len(sys.argv) > 4 else 12
TS = 0xD40000
KN = "standalone__tensor_product_equiv_equiformer__graph_kernel"
s = open(src).read()
L = []; a = L.append
a(".p2align 8"); a(".globl probe_kernel"); a(".type probe_kernel,@function"); a("probe_kernel:")
a("s_cmp_ge_u32 s2, 1"); a("s_cbranch_scc1 PR_END")
a("s_load_dwordx2 s[4:5], s[0:1], 88"); a("s_memrealtime s[10:11]")
a("v_min_u32 v1, 249, v0"); a("v_lshlrev_b32 v1, 10, v1"); a("v_add_u32 v2, 0x%x, v1" % TS)
a("v_mov_b32 v4, 0"); a("v_mov_b32 v5, -1"); a("v_mov_b32 v6, 0")
a("ds_write_b32 v4, v5"); a("ds_write_b32 v4, v6 offset:4"); a("s_waitcnt lgkmcnt(0)"); a("s_barrier")
if idx >= 0:
    for w in range(12): a("global_load_dword v%d, v2, s[4:5] offset:%d" % (10 + w, w * 64))
    for w in range(nw): a("global_load_dword v%d, v2, s[4:5] offset:%d" % (30 + w, w * 64 + idx * 4))
    a("s_waitcnt vmcnt(0)")
    for w in range(1, 12): a("v_min_u32 v10, v10, v%d" % (10 + w))
    for w in range(1, nw): a("v_max_u32 v30, v30, v%d" % (30 + w))
    a("ds_min_u32 v4, v10"); a("ds_max_u32 v4, v30 offset:4"); a("s_waitcnt lgkmcnt(0)"); a("s_barrier")
    a("ds_read_b32 v5, v4"); a("ds_read_b32 v6, v4 offset:4"); a("s_waitcnt lgkmcnt(0)")
    a("v_sub_u32 v5, v6, v5"); a("s_nop 1"); a("v_readfirstlane_b32 s6, v5")
    a("s_min_u32 s6, s6, 10000"); a("s_lshl_b32 s6, s6, 2"); a("s_add_u32 s6, s6, 300")
else:
    a("s_movk_i32 s6, 300")
a("PR_SPIN:"); a("s_memrealtime s[12:13]"); a("s_waitcnt lgkmcnt(0)"); a("s_sub_u32 s7, s12, s10"); a("s_cmp_lt_u32 s7, s6"); a("s_cbranch_scc1 PR_SPIN")
a("PR_END:"); a("s_endpgm")
code = "\n".join(("    " + x if not (x.endswith(":") or x.startswith(".")) else x) for x in L) + "\n"
s = s.replace('.section .rodata,"a"\n', code + '''.section .rodata,"a"
.p2align 6
.amdhsa_kernel probe_kernel
  .amdhsa_next_free_vgpr 48
  .amdhsa_next_free_sgpr 16
  .amdhsa_accum_offset 48
  .amdhsa_group_segment_fixed_size 0
  .amdhsa_kernarg_size 96
  .amdhsa_user_sgpr_count 2
  .amdhsa_user_sgpr_kernarg_segment_ptr 1
  .amdhsa_system_sgpr_workgroup_id_x 1
.end_amdhsa_kernel
''')
s = re.sub(r"; @launch grid=(\S+) block=(\S+) lds=(\d+)\n", lambda m: "; @launch kernel=%s grid=%s block=%s lds=%s\n; @launch kernel=probe_kernel grid=(1,1,1) block=(256,1,1) lds=64\n" % (KN, m.group(1), m.group(2), m.group(3)), s)
open(out, "w").write(s)
```

```python
import sys

NAME = "standalone__tensor_product_equiv_equiformer__graph"

class Cfg:
    TS = 0
    FORCE_SLOW = 0
    ABL = 0
    AMASK = 0x7ff
    PRE = 4
    ALIGN = 1
    OUT_ST = 2
    K1_LD = 1
    WT_SC1 = 0
    RECST = 0
    SLEEP = 1
    THR = 0
    FLIP = 4
    PFN = 0
    SPOLL = 0
    NGO = 16
    EARLYPUB = 1
    SLEEPB = 1

NCH = 250
NB = 256
NPB = 40
CH = 2560
REC_OFF = 0
KEY_OFF = 0x9D0000
TAB_OFF = 0xA80000
WT_OFF = 0xAC0000
FLAG_OFF = 0xAD0000
EPOCH_OFF = 0xAE0000
TS_OFF = 0xD00000
WS_BYTES = 0x1000000

class Asm:
    def __init__(self):
        self.l = []
    def __call__(self, s):
        self.l.append("    " + s)
    def label(self, s):
        self.l.append(s + ":")
    def raw(self, s):
        self.l.append(s)
    def text(self):
        return "\n".join(self.l) + "\n"

def vr(a, n):
    return "v[%d:%d]" % (a, a + n - 1)
def sr(a, n):
    return "s[%d:%d]" % (a, a + n - 1)

def wave_scan(a, v):
    for m in ("row_shr:1 row_mask:0xf", "row_shr:2 row_mask:0xf", "row_shr:4 row_mask:0xf",
              "row_shr:8 row_mask:0xf", "row_bcast:15 row_mask:0xa", "row_bcast:31 row_mask:0xc"):
        a("s_nop 1")
        a("v_add_u32_dpp v%d, v%d, v%d %s bank_mask:0xf" % (v, v, v, m))

TSB = 64
def stamp(a, cfg, idx):
    if cfg.TS:
        a("s_memrealtime %s" % sr(TSB + 2 * idx, 2))

def stamp_flush(a, cfg, kern, n, s_ws, va, vb, s_tmp):
    if not cfg.TS:
        return
    a("s_mov_b64 exec, -1")
    a("s_lshl_b32 s%d, s2, 10" % s_tmp)
    a("s_add_u32 s%d, s%d, 0x%x" % (s_tmp, s_tmp, TS_OFF + kern * 0x40000))
    a("v_lshrrev_b32 v%d, 6, v0" % va)
    a("v_lshlrev_b32 v%d, 6, v%d" % (va, va))
    a("v_add_u32 v%d, s%d, v%d" % (va, s_tmp, va))
    a("s_waitcnt lgkmcnt(0)")
    for i in range(n):
        a("v_mov_b32 v%d, s%d" % (vb, TSB + 2 * i))
        a("global_store_dword v%d, v%d, %s offset:%d" % (va, vb, sr(s_ws, 2), i * 4))

def publish(a, sWS, sTAG, off, va, vb, st):
    a("s_lshl_b32 s%d, s2, 2" % st)
    a("s_add_u32 s%d, s%d, 0x%x" % (st, st, off))
    a("v_mov_b32 v%d, 0" % vb)
    a("v_mov_b32 v%d, s%d" % (vb + 1, sTAG))
    a("s_mov_b64 exec, 1")
    a("buffer_store_dword v%d, v%d, %s, s%d offen sc1" % (vb + 1, vb, sr(sWS, 4), st))
    a("s_mov_b64 exec, -1")

def poll(a, cfg, tag, sWS, sTAG, off, va, vb, st, go=None):
    a("v_mov_b32 v%d, s%d" % (vb + 1, sTAG))
    a("s_mov_b32 s%d, 0x40000" % (st + 1))
    a("s_cmp_lg_u32 s2, %d" % (NB - 1))
    a("s_cbranch_scc1 POLLG%s" % tag)
    a("s_mov_b32 s%d, 0x%x" % (st, off))
    a("s_movk_i32 s%d, %d" % (st + 3, cfg.THR))
    a("v_lshlrev_b32 v%d, 4, v%d" % (vb, va))
    a.label("POLL%s" % tag)
    a("buffer_load_dwordx4 %s, v%d, %s, s%d offen sc1" % (vr(vb + 2, 4), vb, sr(sWS, 4), st))
    a("s_waitcnt vmcnt(0)")
    for k in range(4):
        a("v_xor_b32 v%d, v%d, v%d" % (vb + 2 + k, vb + 1, vb + 2 + k))
    a("v_or3_b32 v%d, v%d, v%d, v%d" % (vb + 2, vb + 2, vb + 3, vb + 4))
    a("v_or_b32 v%d, v%d, v%d" % (vb + 2, vb + 2, vb + 5))
    a("v_cmp_ne_u32 vcc, 0, v%d" % (vb + 2))
    a("s_cbranch_vccz POLLW%s" % tag)
    if go is not None and 0 < cfg.THR < 64:
        a("v_cmp_eq_u32 vcc, 0, v%d" % (vb + 3))
        a("s_bcnt1_i32_b64 s%d, vcc" % (st + 2))
        a("s_cmp_lt_u32 s%d, s%d" % (st + 2, st + 3))
        a("s_cbranch_scc1 POLLN%s" % tag)
        a("s_movk_i32 s%d, 100" % (st + 3))
        a("v_lshlrev_b32 v%d, 8, v%d" % (vb + 2, va))
        a("s_mov_b64 exec, 0x%x" % ((1 << cfg.NGO) - 1))
        a("buffer_store_dword v%d, v%d, %s, s%d offen offset:1028 sc1" % (vb + 1, vb + 2, sr(sWS, 4), st))
        a("s_mov_b64 exec, -1")
        a.label("POLLN%s" % tag)
    a("s_sub_u32 s%d, s%d, 1" % (st + 1, st + 1))
    a("s_cbranch_scc0 POLL%s" % tag)
    a.label("POLLW%s" % tag)
    a("v_lshlrev_b32 v%d, 8, v%d" % (vb, va))
    a("s_mov_b64 exec, 0x%x" % ((1 << cfg.NGO) - 1))
    a("buffer_store_dword v%d, v%d, %s, s%d offen offset:1024 sc1" % (vb + 1, vb, sr(sWS, 4), st))
    a("s_mov_b64 exec, -1")
    a("s_branch POLLED%s" % tag)
    a.label("POLLG%s" % tag)
    a("s_and_b32 s%d, s2, %d" % (st, cfg.NGO - 1))
    a("s_lshl_b32 s%d, s%d, 8" % (st, st))
    a("s_add_u32 s%d, s%d, 0x%x" % (st, st, off + 1024))
    if cfg.SPOLL:
        a("s_add_u32 s40, s%d, s%d" % (sWS, st))
        a("s_addc_u32 s41, s%d, 0" % (sWS + 1))
        a.label("POLLS%s" % tag)
        a("s_load_dwordx2 s[36:37], s[40:41], 0 glc")
        a("s_waitcnt lgkmcnt(0)")
        a("s_cmp_eq_u32 s36, s%d" % sTAG)
        a("s_cbranch_scc1 POLLED%s" % tag)
        if go is not None and 0 < cfg.THR < 64:
            a("s_cmp_lg_u32 s37, s%d" % sTAG)
            a("s_cbranch_scc1 POLLT%s" % tag)
            a("ds_write_b32 v%d, v%d offset:12" % go)
            a.label("POLLT%s" % tag)
        a("s_sub_u32 s%d, s%d, 1" % (st + 1, st + 1))
        a("s_cbranch_scc1 POLLED%s" % tag)
        a("s_sleep %d" % (cfg.SLEEP if tag == "A" else cfg.SLEEPB))
        a("s_branch POLLS%s" % tag)
    a("v_mov_b32 v%d, 0" % vb)
    a("s_mov_b64 exec, 1")
    a.label("POLLH%s" % tag)
    a("buffer_load_dwordx2 %s, v%d, %s, s%d offen sc1" % (vr(vb + 2, 2), vb, sr(sWS, 4), st))
    a("s_waitcnt vmcnt(0)")
    a("v_cmp_ne_u32 vcc, v%d, v%d" % (vb + 1, vb + 2))
    a("s_cbranch_vccz POLLX%s" % tag)
    if go is not None and 0 < cfg.THR < 64:
        a("v_cmp_ne_u32 vcc, v%d, v%d" % (vb + 1, vb + 3))
        a("s_cbranch_vccnz POLLM%s" % tag)
        a("ds_write_b32 v%d, v%d offset:12" % go)
        a.label("POLLM%s" % tag)
    a("s_sub_u32 s%d, s%d, 1" % (st + 1, st + 1))
    a("s_cbranch_scc1 POLLX%s" % tag)
    a("s_sleep %d" % (cfg.SLEEP if tag == "A" else cfg.SLEEPB))
    a("s_branch POLLH%s" % tag)
    a.label("POLLX%s" % tag)
    a("s_mov_b64 exec, -1")
    a.label("POLLED%s" % tag)

def gen_producer(a, cfg, sWS, sWAVE, sWR, L_WR, sTAG, L_TAB, L_PC, sB):
    L_BASE = 1024
    L_REC = 12288
    L_KEY = L_REC + CH * 16
    ws = sr(sWS, 2)
    ld = " nt" if cfg.K1_LD else ""
    st = " sc1"
    def tag_load():
        a("s_add_u32 s40, s%d, 0x%x" % (sWS, EPOCH_OFF))
        a("s_addc_u32 s41, s%d, 0" % (sWS + 1))
        a("s_load_dword s%d, s[40:41], 0" % sTAG)
    def scan4():
        a("v_add_u32 v49, v44, v45")
        a("v_add_u32 v50, v49, v46")
        a("v_add_u32 v51, v50, v47")
        a("v_mov_b32 v52, v51")
        wave_scan(a, 52)
        a("v_sub_u32 v52, v52, v51")
        a("v_add_u32 v53, v52, v44")
        a("v_add_u32 v54, v52, v49")
        a("v_add_u32 v55, v52, v50")
    a("v_and_b32 v31, 63, v0")
    a("v_lshlrev_b32 v5, 2, v0")
    a("v_mov_b32 v6, 0")
    a("ds_write_b32 v5, v6")
    a("v_lshlrev_b32 v43, 4, v31")
    a("s_cmp_eq_u32 s%d, 10" % sWAVE)
    a("s_cbranch_scc1 P_W10")
    a("s_cmp_eq_u32 s%d, 11" % sWAVE)
    a("s_cbranch_scc1 P_W11")
    a("s_cmp_ge_u32 s2, %d" % NCH)
    a("s_cbranch_scc1 P_EXTRA")
    a("s_mul_i32 s32, s2, 640")
    a("v_add_u32 v1, s32, v0")
    a("v_lshlrev_b32 v2, 4, v1")
    a("v_lshlrev_b32 v3, 5, v1")
    a("v_mul_u32_u24 v4, 24, v1")
    a("s_movk_i32 s33, 625")
    a("v_lshlrev_b32 v40, 4, v0")
    a("s_waitcnt lgkmcnt(0)")
    a("v_mov_b32 v6, 1")
    a("global_load_dwordx4 v[8:11], v2, s[30:31]" + ld)
    tag_load()
    a("s_barrier")
    a("global_load_dwordx4 v[12:15], v2, s[28:29]" + ld)
    a("global_load_dwordx4 v[16:19], v3, s[26:27]" + ld)
    a("global_load_dwordx4 v[20:23], v3, s[26:27] offset:16" + ld)
    a("global_load_dwordx4 v[24:27], v4, s[24:25]" + ld)
    a("global_load_dwordx2 v[28:29], v4, s[24:25] offset:16" + ld)
    a("s_waitcnt vmcnt(5)")
    for k in range(4):
        a("v_mul_u32_u24 v%d, 429497, v%d" % (32 + k, 8 + k))
        a("v_lshrrev_b32 v%d, 24, v%d" % (32 + k, 32 + k))
        a("v_mad_u32_u24 v41, v%d, s33, 15" % (32 + k))
        a("v_lshlrev_b32 v%d, 2, v%d" % (32 + k, 32 + k))
        a("ds_add_rtn_u32 v%d, v%d, v6" % (36 + k, 32 + k))
        a("v_lshrrev_b32 v41, 4, v41")
        a("v_sub_u32 v%d, v%d, v41" % (8 + k, 8 + k))
    a("s_lshl_b32 s35, s%d, 10" % sWAVE)
    a("s_waitcnt lgkmcnt(0)")
    a("s_barrier")
    a("ds_read_b128 v[44:47], v43")
    a("v_add_u32 v42, s35, v43")
    for k in range(4):
        a("v_add_u32 v%d, s35, v%d" % (32 + k, 32 + k))
    a("s_waitcnt lgkmcnt(0)")
    scan4()
    a("ds_write_b128 v42, v[52:55] offset:%d" % L_BASE)
    for k in range(4):
        a("ds_read_b32 v%d, v%d offset:%d" % (32 + k, 32 + k, L_BASE))
    a("s_waitcnt lgkmcnt(0)")
    for k in range(4):
        a("v_add_u32 v%d, v%d, v%d" % (32 + k, 32 + k, 36 + k))
        a("ds_write_b8 v%d, v%d offset:%d" % (32 + k, 8 + k, L_KEY))
        a("v_lshlrev_b32 v%d, 4, v%d" % (36 + k, 32 + k))
    a("s_waitcnt lgkmcnt(0)")
    a("s_barrier")
    a("s_mov_b32 s34, 0x05040100")
    a("s_mov_b32 s35, 0x07060100")
    a("s_waitcnt vmcnt(0)")
    stamp(a, cfg, 13)
    a("v_mov_b32 v44, v16")
    a("v_mov_b32 v45, v17")
    a("v_perm_b32 v46, v24, v12, s34")
    a("v_alignbit_b32 v47, v25, v24, 16")
    a("ds_write_b128 v36, v[44:47] offset:%d" % L_REC)
    a("v_mov_b32 v48, v18")
    a("v_mov_b32 v49, v19")
    a("v_perm_b32 v50, v25, v13, s35")
    a("v_mov_b32 v51, v26")
    a("ds_write_b128 v37, v[48:51] offset:%d" % L_REC)
    a("v_mov_b32 v16, v20")
    a("v_mov_b32 v17, v21")
    a("v_perm_b32 v18, v27, v14, s34")
    a("v_alignbit_b32 v19, v28, v27, 16")
    a("ds_write_b128 v38, v[16:19] offset:%d" % L_REC)
    a("v_perm_b32 v24, v28, v15, s35")
    a("v_mov_b32 v25, v29")
    a("ds_write_b128 v39, v[22:25] offset:%d" % L_REC)
    a("v_mov_b32 v7, %d" % L_PC)
    a("s_mov_b64 exec, 1")
    a("ds_add_u32 v7, v6 offset:4")
    a("s_mov_b64 exec, -1")
    a.label("P_SPIN")
    a("s_sleep 1")
    a("ds_read_b32 v61, v7 offset:4")
    a("s_waitcnt lgkmcnt(0)")
    a("v_readfirstlane_b32 s32, v61")
    a("s_cmp_lt_u32 s32, 10")
    a("s_cbranch_scc1 P_SPIN")
    for k in range(4):
        a("ds_read_b128 %s, v40 offset:%d" % (vr(64 + 4 * k, 4), L_REC + k * 10240))
    a("s_branch P_DONE")
    a.label("P_W10")
    a("s_lshl_b32 s32, s2, 10")
    a("s_add_u32 s32, s32, 0x%x" % TAB_OFF)
    a("v_add_u32 v56, s32, v43")
    a("s_mul_i32 s32, s2, %d" % CH)
    a("s_add_u32 s32, s32, 0x%x" % KEY_OFF)
    a("v_add_u32 v57, s32, v43")
    a("s_waitcnt lgkmcnt(0)")
    tag_load()
    a("s_barrier")
    a("s_barrier")
    a("ds_read_b128 v[44:47], v43")
    a("s_waitcnt lgkmcnt(0)")
    scan4()
    for k in range(4):
        a("v_lshl_or_b32 v%d, v%d, 16, v%d" % (52 + k, 44 + k, 52 + k))
    a("global_store_dwordx4 v56, v[52:55], %s" % ws + st)
    a("s_add_u32 s%d, s%d, 1" % (sTAG, sTAG))
    a("s_barrier")
    a("s_cmp_ge_u32 s2, %d" % NCH)
    a("s_cbranch_scc1 P_NOKEYS")
    for k in range(3):
        a("ds_read_b128 %s, v43 offset:%d" % (vr(64 + 4 * k, 4), L_KEY + k * 1024))
    a("s_waitcnt lgkmcnt(0)")
    a("global_store_dwordx4 v57, v[64:67], %s" % ws + st)
    a("global_store_dwordx4 v57, v[68:71], %s offset:1024" % ws + st)
    a("s_mov_b32 exec_hi, 0")
    a("global_store_dwordx4 v57, v[72:75], %s offset:2048" % ws + st)
    a("s_mov_b64 exec, -1")
    a.label("P_NOKEYS")
    a("s_waitcnt vmcnt(0)")
    publish(a, sWS, sTAG, FLAG_OFF, 31, 60, 32)
    stamp(a, cfg, 13)
    a("s_branch P_DONE2")
    a.label("P_W11")
    a("v_lshrrev_b32 v2, 3, v31")
    a("v_min_u32 v2, 4, v2")
    a("v_lshlrev_b32 v2, 7, v2")
    a("v_and_b32 v3, 7, v0")
    a("v_lshl_add_u32 v2, v3, 4, v2")
    a("v_cmp_le_u32 vcc, 40, v31")
    a("v_mov_b32 v7, %d" % L_PC)
    a("ds_write_b32 v7, v6")
    a("ds_write_b32 v7, v6 offset:4")
    a("ds_write_b32 v7, v6 offset:8")
    a("ds_write_b32 v7, v6 offset:12")
    a("v_mov_b32 v4, 0x80008000")
    a("v_cndmask_b32 v4, 0, v4, vcc")
    a("v_lshlrev_b32 v3, 5, v31")
    a("v_add_u32 v3, %d, v3" % L_WR)
    a("v_mov_b32 v5, 0xffff0000")
    a("s_waitcnt lgkmcnt(0)")
    tag_load()
    for d in range(4):
        a("global_load_dwordx4 %s, v2, %s offset:%d" % (vr(8 + 4 * d, 4), sr(sWR, 2), d * 640))
    a("s_barrier")
    a("s_barrier")
    a("s_waitcnt lgkmcnt(0)")
    a("s_barrier")
    a("s_waitcnt vmcnt(0)")
    for q in range(16):
        a("v_xor_b32 v%d, v4, v%d" % (8 + q, 8 + q))
        a("v_lshlrev_b32 v%d, 16, v%d" % (64 + 2 * q, 8 + q))
        a("v_and_b32 v%d, v5, v%d" % (65 + 2 * q, 8 + q))
    a("s_mov_b32 exec_hi, 0xffff")
    for d in range(4):
        a("ds_write_b128 v3, %s offset:%d" % (vr(64 + 8 * d, 4), d * 1536))
        a("ds_write_b128 v3, %s offset:%d" % (vr(68 + 8 * d, 4), d * 1536 + 16))
    a("s_mov_b64 exec, -1")
    a("s_waitcnt lgkmcnt(0)")
    a("s_add_u32 s%d, s%d, 1" % (sTAG, sTAG))
    a("s_branch P_DONE2")
    a.label("P_EXTRA")
    a("s_load_dwordx4 s[36:39], s[0:1], 48")
    a("s_waitcnt lgkmcnt(0)")
    tag_load()
    for i in range(3):
        a("s_barrier")
    a("s_cmp_eq_u32 s2, %d" % (NCH + 5))
    a("s_cbranch_scc1 P_DONE")
    a("s_cmp_ge_u32 s%d, 8" % sWAVE)
    a("s_cbranch_scc1 P_DONE")
    a("s_sub_u32 s32, s2, %d" % NCH)
    a("v_lshrrev_b32 v1, 3, v0")
    a("v_and_b32 v2, 7, v0")
    a("v_lshlrev_b32 v3, 10, v2")
    a("v_lshl_add_u32 v3, v1, 1, v3")
    a("v_lshrrev_b32 v4, 4, v1")
    a("v_mul_u32_u24 v4, 10240, v4")
    a("v_lshl_add_u32 v4, v2, 8, v4")
    a("v_and_b32 v5, 15, v1")
    a("v_lshl_add_u32 v4, v5, 4, v4")
    a("s_lshl_b32 s33, s32, 13")
    a("s_lshl_b32 s34, s32, 11")
    a("s_add_u32 s34, s34, 0x%x" % WT_OFF)
    a("v_add_u32 v4, s34, v4")
    a("s_cmp_ge_u32 s32, 2")
    a("s_cselect_b32 s36, s38, s36")
    a("s_cselect_b32 s37, s39, s37")
    a("s_cselect_b32 s35, 0x4000, 0")
    a("s_sub_u32 s33, s33, s35")
    a("v_add_u32 v3, s33, v3")
    for i in range(4):
        a("global_load_ushort v%d, v3, s[36:37] offset:%d" % (64 + i, i * 256))
        a("global_load_ushort v%d, v3, s[36:37] offset:%d" % (68 + i, i * 256 + 128))
    a("s_waitcnt vmcnt(0)")
    for i in range(4):
        a("v_lshl_or_b32 v%d, v%d, 16, v%d" % (64 + i, 68 + i, 64 + i))
    a("global_store_dwordx4 v4, v[64:67], %s" % ws + st)
    a.label("P_DONE")
    a("s_waitcnt lgkmcnt(0)")
    a("s_add_u32 s%d, s%d, 1" % (sTAG, sTAG))
    a.label("P_DONE2")

def path6(g, l):
    if g == 0 and l == 0: return 0
    if g == l: return 1
    if l == 0: return 2
    if g == 0: return 3
    return 4 if (g, l) in ((2, 3), (3, 1), (1, 2)) else 5

def wmat(o, jp):
    if o == 0:
        return 0 if jp == 0 else 1
    if jp == o: return 2
    if jp == 0: return 3
    return 4

def gen_k2(a, cfg):
    NW = 12
    GRCAP = 3168
    QFAST, QSAFE = 3072, 1792
    L_S0 = GRCAP * 32
    L_WIN = L_S0
    L_SRC = L_S0 + NPB * 1024
    L_HIST = L_SRC + 6400
    L_NEXT = L_HIST + 256
    L_WR = L_HIST + 512
    L_OUT = L_SRC
    L_TAB = L_WR + 6144
    L_PC = L_TAB + 1024
    lds = 163840
    assert L_WR + 6144 <= lds and L_OUT + NPB * 528 <= lds
    ITF = 4
    sX, sWS, sOUT, sWR = 4, 8, 12, 16
    sWAVE, sROFF, sTOT, sB, sMORE, sITEM = 18, 19, 20, 21, 22, 23
    xN, xH256, xFIRST, xREM = 24, 25, 26, 27
    pN, pH256, pFIRST, pREM = 28, 29, 30, 31
    cN, cH256, cFIRST, cREM = 32, 33, 34, 35
    xSAD, pSAD, cSAD, xVALID = 36, 37, 38, 39
    xGA, xLIM, xSA, sQCAP = 40, 41, 42, 43
    sT0, sT1, sT2, sT3 = 44, 45, 46, 47
    sKEYOFF, sHI16, sSELLO, sSELHI = 48, 49, 50, 51
    sSV = 52
    sNN, sNN2, sNODE0 = 54, 55, 56
    sCK = 56
    sMT, sNT = 60, 61
    sTAG, sFIRSTR = 62, 63
    sFLIP = 3
    vTID, vLANE, vC16, vG16, vTRO, vG2, vINFO, vCNT, vNEXT, vSW, vONE, vWA0, vWD, vNXA = range(14)
    vF = 16
    vAD = 48
    vPB = 64
    vACC = 96
    vG = 128
    vT = 132
    vOA = 148
    vREC, vKEY, vRANK, vTAB, vPRE, vLEN, vDEL, vM, vRA = 64, 80, 84, 40, 44, 48, 52, 56, 60
    vX = 108
    vWL = 96
    vREMC, vT0, vT1, vT2, vT3, vHI, vWIN = range(vT, vT + 7)
    scan = ("row_shr:1 row_mask:0xf", "row_shr:2 row_mask:0xf", "row_shr:4 row_mask:0xf",
            "row_shr:8 row_mask:0xf", "row_bcast:15 row_mask:0xa", "row_bcast:31 row_mask:0xc")

    a.raw(".p2align 8")
    a.raw(".globl %s_kernel" % NAME)
    a.raw(".type %s_kernel,@function" % NAME)
    a.label("%s_kernel" % NAME)
    a("s_cmp_ge_u32 s2, %d" % NB)
    a("s_cbranch_scc1 K2_END")
    stamp(a, cfg, 0)
    a("s_load_dwordx4 s[28:31], s[0:1], 24")
    a("s_load_dwordx4 s[24:27], s[0:1], 8")
    a("s_load_dwordx2 %s, s[0:1], 88" % sr(sWS, 2))
    a("s_load_dwordx2 %s, s[0:1], 0" % sr(sX, 2))
    a("s_load_dwordx2 %s, s[0:1], 72" % sr(sOUT, 2))
    a("s_load_dwordx2 %s, s[0:1], 40" % sr(sWR, 2))
    a("v_lshrrev_b32 v1, 6, v0")
    a("s_nop 0")
    a("v_readfirstlane_b32 s%d, v1" % sWAVE)
    a("s_movk_i32 s%d, 10000" % (sX + 2))
    a("s_mov_b32 s%d, 0x20000" % (sX + 3))
    a("s_mov_b32 s%d, 0x%x" % (sWS + 2, WS_BYTES))
    a("s_mov_b32 s%d, 0x20000" % (sWS + 3))
    a("s_mov_b32 s%d, 0" % (sOUT + 2))
    a("s_mov_b32 s%d, 0x20000" % (sOUT + 3))
    a("s_and_b32 s%d, s2, 7" % sB)
    a("s_lshl_b32 s%d, s%d, 5" % (sB, sB))
    a("s_lshr_b32 s%d, s2, 3" % sT0)
    a("s_add_u32 s%d, s%d, s%d" % (sB, sB, sT0))
    gen_producer(a, cfg, sWS, sWAVE, sWR, L_WR, sTAG, L_TAB, L_PC, sB)
    a("v_and_b32 v%d, 63, v0" % vLANE)
    a("s_mov_b32 s%d, 1" % sFIRSTR)
    if cfg.FLIP:
        a("s_and_b32 s%d, s2, %d" % (sFLIP, cfg.FLIP))
        a("s_cmp_lg_u32 s%d, 0" % sFLIP)
        a("s_cselect_b32 s%d, 256, 0" % sFLIP)
    else:
        a("s_mov_b32 s%d, 0" % sFLIP)
    a("s_or_b32 s%d, s%d, 0x%x" % (sX + 1, sX + 1, 512 << 16))
    a("v_lshrrev_b32 v%d, 3, v%d" % (vT2, vLANE))
    a("v_and_b32 v%d, 7, v0" % vT0)
    a("s_mov_b32 s%d, 0x05040100" % sSELLO)
    a("s_mov_b32 s%d, 0x07060302" % sSELHI)
    a("s_mov_b32 s%d, 0x%x" % (sKEYOFF, KEY_OFF))
    a("s_mov_b32 s%d, 0xffff0000" % sHI16)
    a("s_mov_b32 s%d, 0" % sROFF)
    a("s_movk_i32 s%d, %d" % (sQCAP, 768 if cfg.FORCE_SLOW == 1 else QFAST))
    for k in range(1, 4):
        a("s_movk_i32 s%d, %d" % (sCK + k, k * CH))
    a("s_mul_i32 s%d, s%d, 625" % (sNODE0, sB))
    a("s_add_u32 s%d, s%d, %d" % (sNN, sNODE0, 625 + 15))
    a("s_add_u32 s%d, s%d, 15" % (sNODE0, sNODE0))
    a("s_lshr_b32 s%d, s%d, 4" % (sNODE0, sNODE0))
    a("s_lshr_b32 s%d, s%d, 4" % (sNN, sNN))
    a("s_sub_u32 s%d, s%d, s%d" % (sNN, sNN, sNODE0))
    a("s_lshl_b32 s%d, s%d, 1" % (sNN2, sNN))
    a("s_lshr_b32 s%d, s%d, 2" % (sMT, sWAVE))
    a("s_and_b32 s%d, s%d, 3" % (sNT, sWAVE))
    a("v_and_b32 v%d, 15, v0" % vC16)
    a("v_lshlrev_b32 v%d, 4, v%d" % (vC16, vC16))
    a("v_and_b32 v%d, 48, v0" % vG16)
    a("v_bfe_u32 v%d, v0, 2, 2" % vT1)
    a("v_lshlrev_b32 v%d, 7, v%d" % (vTRO, vT1))
    a("v_lshl_add_u32 v%d, v%d, 1, v%d" % (vTRO, vG16, vTRO))
    a("v_and_b32 v%d, 3, v0" % vT1)
    a("v_lshl_add_u32 v%d, v%d, 3, v%d" % (vTRO, vT1, vTRO))
    a("v_lshrrev_b32 v%d, 3, v%d" % (vG2, vG16))
    a("v_lshlrev_b32 v%d, 4, v%d" % (vSW, vG16))
    a("v_mov_b32 v%d, 1" % vONE)
    a("v_mov_b32 v%d, %d" % (vNXA, L_NEXT))
    K = [0, 0]
    for h in range(2):
        for idx in range(8):
            K[h] |= path6(idx >> 1, 2 * h + (idx & 1)) << (4 * idx)
    a("v_lshlrev_b32 v%d, 2, v%d" % (vT1, vT2))
    a("s_mov_b32 s%d, 0x%x" % (sT0, K[0]))
    a("v_bfe_u32 v%d, s%d, v%d, 3" % (vWA0, sT0, vT1))
    a("s_mov_b32 s%d, 0x%x" % (sT0, K[1]))
    a("v_bfe_u32 v%d, s%d, v%d, 3" % (vWD, sT0, vT1))
    a("v_sub_u32 v%d, v%d, v%d" % (vWD, vWD, vWA0))
    a("v_lshlrev_b32 v%d, 8, v%d" % (vWA0, vWA0))
    a("v_lshl_add_u32 v%d, v%d, 5, v%d" % (vWA0, vT0, vWA0))
    a("v_add_u32 v%d, %d, v%d" % (vWA0, L_WR, vWA0))
    for i in range(16):
        a("v_mov_b32 v%d, 0" % (vOA + i))

    def drain(tag, nyoung):
        a("s_cmp_eq_u32 s%d, 0" % sFIRSTR)
        a("s_cbranch_scc1 K2_DR%s" % tag)
        a("s_mov_b32 s%d, 0" % sFIRSTR)
        a("s_cmp_ge_u32 s%d, 10" % sWAVE)
        a("s_cbranch_scc1 K2_DR%s" % tag)
        a("v_mov_b32 v%d, %d" % (vT0, L_PC))
        a("s_waitcnt vmcnt(%d)" % nyoung)
        a("s_mov_b64 exec, 1")
        a("ds_add_rtn_u32 v%d, v%d, v%d" % (vT1, vT0, vONE))
        a("s_mov_b64 exec, -1")
        a("s_waitcnt lgkmcnt(0)")
        a("v_readfirstlane_b32 s%d, v%d" % (sT0, vT1))
        stamp(a, cfg, 15)
        a("s_cmp_lg_u32 s%d, 9" % sT0)
        a("s_cbranch_scc1 K2_DR%s" % tag)
        publish(a, sWS, sTAG, FLAG_OFF + 0x4000, vLANE, vT0, sT0)
        a.label("K2_DR%s" % tag)
    def pf_x(tag):
        if not cfg.PFN:
            return
        a("s_cmp_ge_u32 s%d, %d" % (sWAVE, cfg.PFN))
        a("s_cbranch_scc1 K2_NOPF%s" % tag)
        a("s_lshr_b32 s%d, s2, 3" % sT0)
        a("s_mul_i32 s%d, s%d, 313" % (sT0, sT0))
        a("v_lshrrev_b32 v%d, 1, v0" % (vT + 8))
        a("v_add_u32 v%d, s%d, v%d" % (vT + 8, sT0, vT + 8))
        a("v_and_b32 v%d, 1, v0" % (vT + 9))
        a("v_lshlrev_b32 v%d, 7, v%d" % (vT + 9, vT + 9))
        a("buffer_load_dword v14, %s, %s, 0 idxen offen" % (vr(vT + 8, 2), sr(sX, 4)))
        a.label("K2_NOPF%s" % tag)
    a.label("K2_ROUND")
    a("v_lshlrev_b32 v%d, 4, v0" % vT0)
    a("v_add_u32 v%d, %d, v%d" % (vT1, L_WIN, vT0))
    for i in range(4):
        a("v_mov_b32 v%d, 0" % (vG + i))
    a("ds_write_b128 v%d, %s" % (vT1, vr(vG, 4)))
    a("v_cmp_gt_u32 vcc, 400, v0")
    a("v_add_u32 v%d, %d, v%d" % (vT1, L_SRC, vT0))
    a("v_mov_b32 v%d, 0xffff0000" % vHI)
    a("v_cndmask_b32 v%d, 0, -1, vcc" % (vX + 1))
    a("v_cmp_eq_u32 vcc, 416, v0")
    a("v_mov_b32 v%d, v%d" % (vX + 2, vX + 1))
    a("v_mov_b32 v%d, v%d" % (vX + 3, vX + 1))
    a("v_cndmask_b32 v%d, v%d, %d, vcc" % (vX + 0, vX + 1, NW))
    a("v_cmp_gt_u32 vcc, 417, v0")
    a("s_and_saveexec_b64 %s, vcc" % sr(sSV, 2))
    a("s_cbranch_execz K2_INIT1")
    a("ds_write_b128 v%d, %s" % (vT1, vr(vX, 4)))
    a.label("K2_INIT1")
    a("s_mov_b64 exec, -1")
    a("s_cmp_eq_u32 s%d, 0" % sFIRSTR)
    a("s_cbranch_scc1 K2_LATER")
    a("s_cmp_eq_u32 s%d, 11" % sWAVE)
    a("s_cbranch_scc1 K2_NOPUB")
    a("s_cmp_lg_u32 s%d, 10" % sWAVE)
    a("s_cbranch_scc1 K2_DRAIN")
    a("v_mov_b32 v%d, %d" % (vT1, L_PC))
    poll(a, cfg, "A", sWS, sTAG, FLAG_OFF, vLANE, vM, sT0, (vT1, vONE))
    stamp(a, cfg, 14)
    a("s_lshl_b32 s%d, s%d, 2" % (sT0, sB))
    a("s_add_u32 s%d, s%d, 0x%x" % (sT0, sT0, TAB_OFF))
    a("v_lshlrev_b32 v%d, 12, v%d" % (vT0, vLANE))
    for k in range(4):
        a("buffer_load_dword v%d, v%d, %s, s%d offen offset:%d sc1" % (vTAB + k, vT0, sr(sWS, 4), sT0, k * 1024))
    if cfg.THR:
        a("ds_write_b32 v%d, v%d offset:12" % (vT1, vONE))
    a("v_lshlrev_b32 v%d, 4, v%d" % (vT0, vLANE))
    a("v_add_u32 v%d, %d, v%d" % (vT0, L_TAB, vT0))
    a("s_waitcnt vmcnt(0)")
    a("ds_write_b128 v%d, %s" % (vT0, vr(vTAB, 4)))
    a("s_branch K2_NOPUB")
    a.label("K2_DRAIN")
    a("s_cmp_ge_u32 s2, %d" % NCH)
    a("s_cbranch_scc1 K2_NOPUB")
    a("v_mov_b32 v%d, %d" % (vT0, L_PC))
    a("v_lshlrev_b32 v%d, 4, v0" % vT2)
    a("s_mul_i32 s%d, s2, %d" % (sT1, CH * 16))
    if cfg.THR:
        a.label("K2_GSPIN")
        a("ds_read_b32 v%d, v%d offset:12" % (vT1, vT0))
        a("s_waitcnt lgkmcnt(0)")
        a("v_readfirstlane_b32 s%d, v%d" % (sT0, vT1))
        a("s_cmp_lg_u32 s%d, 0" % sT0)
        a("s_cbranch_scc1 K2_GO")
        a("s_sleep 1")
        a("s_branch K2_GSPIN")
    a.label("K2_GO")
    for k in range(4):
        a("buffer_store_dwordx4 %s, v%d, %s, s%d offen %s" % (vr(64 + 4 * k, 4), vT2, sr(sWS, 4), sT1, ["sc1", "sc0 sc1", "sc1 nt", "sc0 sc1 nt"][cfg.RECST]))
        if k < 3:
            a("s_add_u32 s%d, s%d, 10240" % (sT1, sT1))
    stamp(a, cfg, 14)
    a.label("K2_NOPUB")
    if cfg.EARLYPUB:
        drain("E", 0)
        pf_x("E")
    a("s_waitcnt lgkmcnt(0)")
    a("s_barrier")
    stamp(a, cfg, 1)
    a("s_cmp_lg_u32 s%d, 11" % sWAVE)
    a("s_cbranch_scc1 K2_SYNCED")
    poll(a, cfg, "B", sWS, sTAG, FLAG_OFF + 0x4000, vLANE, vM, sT0)
    a("v_mov_b32 v%d, %d" % (vT0, L_PC))
    a("ds_write_b32 v%d, v%d offset:8" % (vT0, vONE))
    stamp(a, cfg, 14)
    a("s_cmp_lg_u32 s2, 0")
    a("s_cbranch_scc1 K2_SYNCED")
    a("v_mov_b32 v%d, 0x%x" % (vT0, EPOCH_OFF))
    a("s_mov_b64 exec, 1")
    a("buffer_store_dword v%d, v%d, %s, 0 offen sc1" % (vM + 1, vT0, sr(sWS, 4)))
    a("s_mov_b64 exec, -1")
    a("s_branch K2_SYNCED")
    a.label("K2_LATER")
    a("s_waitcnt lgkmcnt(0)")
    a("s_barrier")
    a.label("K2_SYNCED")
    a("v_lshlrev_b32 v%d, 4, v%d" % (vT0, vLANE))
    a("v_add_u32 v%d, %d, v%d" % (vT0, L_TAB, vT0))
    a("ds_read_b128 %s, v%d" % (vr(vTAB, 4), vT0))
    a("s_waitcnt lgkmcnt(0)")
    a.label("K2_TABOK")
    stamp(a, cfg, 2)
    for k in range(4):
        a("v_lshrrev_b32 v%d, 16, v%d" % (vLEN + k, vTAB + k))
    a("v_add_u32 v%d, v%d, v%d" % (vPRE + 2, vLEN + 0, vLEN + 1))
    a("v_add_u32 v%d, v%d, v%d" % (vPRE + 3, vPRE + 2, vLEN + 2))
    a("v_add_u32 v%d, v%d, v%d" % (vT0, vPRE + 3, vLEN + 3))
    a("v_mov_b32 v%d, v%d" % (vPRE, vT0))
    a("v_mul_u32_u24 v%d, %d, v%d" % (vT1, 4 * CH, vLANE))
    fill = []
    for k in range(4):
        fill.append("v_and_b32 v%d, 0xffff, v%d" % (vDEL + k, vTAB + k))
        fill.append("v_add3_u32 v%d, v%d, v%d, s%d" % (vDEL + k, vDEL + k, vT1, sCK + k) if k else "v_add_u32 v%d, v%d, v%d" % (vDEL, vDEL, vT1))
    fill += ["s_lshl_b32 s%d, s%d, 8" % (sT0, sWAVE), "s_add_u32 s%d, s%d, s%d" % (sT0, sT0, sROFF),
             "s_add_u32 s%d, s%d, s%d" % (sT1, sROFF, sQCAP), "s_lshl_b32 s%d, s%d, 10" % (sT2, sWAVE)]
    a("s_nop 0")
    for i, m in enumerate(scan):
        a("v_add_u32_dpp v%d, v%d, v%d %s bank_mask:0xf" % (vPRE, vPRE, vPRE, m))
        a(fill[2 * i]); a(fill[2 * i + 1])
    a("v_readlane_b32 s%d, v%d, 63" % (sTOT, vPRE))
    a("v_sub_u32 v%d, v%d, v%d" % (vPRE, vPRE, vT0))
    a("s_add_u32 s%d, s%d, %d" % (sT2, sT2, L_WIN))
    a("s_cmp_gt_u32 s%d, s%d" % (sTOT, sT1))
    a("s_cselect_b32 s%d, 1, 0" % sMORE)
    a("s_min_u32 s%d, s%d, s%d" % (sT1, sT1, sTOT))
    a("s_sub_i32 s%d, s%d, s%d" % (sT1, sT1, sT0))
    a("v_sub_u32 v%d, s%d, v%d" % (vREMC, sT1, vLANE))
    a("s_cmp_le_i32 s%d, 0" % sT1)
    a("s_cbranch_scc1 K2_NOKEY")
    a("v_add_u32 v%d, v%d, v%d" % (vPRE + 1, vPRE, vLEN + 0))
    a("v_add_u32 v%d, v%d, v%d" % (vPRE + 2, vPRE, vPRE + 2))
    a("v_add_u32 v%d, v%d, v%d" % (vPRE + 3, vPRE, vPRE + 3))
    for k in range(4):
        a("v_sub_u32 v%d, v%d, v%d" % (vDEL + k, vDEL + k, vPRE + k))
        a("v_subrev_u32 v%d, s%d, v%d" % (vPRE + k, sT0, vPRE + k))
        a("v_add_u32 v%d, v%d, v%d" % (vLEN + k, vLEN + k, vPRE + k))
        a("v_max_i32 v%d, 0, v%d" % (vT2, vPRE + k))
        a("v_lshl_add_u32 v%d, v%d, 2, s%d" % (vT2, vT2, sT2))
        a("v_cmpx_lt_i32 vcc, 0, v%d" % (vLEN + k))
        a("v_cmpx_gt_i32 vcc, 256, v%d" % (vPRE + k))
        a("ds_max_u32 v%d, v%d" % (vT2, vDEL + k))
        a("s_mov_b64 exec, -1")
    a("v_lshl_add_u32 v%d, v%d, 2, s%d" % (vT2, vLANE, sT2))
    a("ds_read2st64_b32 %s, v%d offset0:0 offset1:1" % (vr(vM, 2), vT2))
    a("ds_read2st64_b32 %s, v%d offset0:2 offset1:3" % (vr(vM + 2, 2), vT2))
    a("v_add_u32 v%d, s%d, v%d" % (vT3, sT0, vLANE))
    a("v_mov_b32 v%d, 0x8000000" % vT2)
    a("s_waitcnt lgkmcnt(0)")
    for m in scan:
        for i in range(4):
            a("v_max_u32_dpp v%d, v%d, v%d %s bank_mask:0xf" % (vM + i, vM + i, vM + i, m))
    a("v_readlane_b32 s%d, v%d, 63" % (sT0, vM + 0))
    a("v_readlane_b32 s%d, v%d, 63" % (sT1, vM + 1))
    a("v_readlane_b32 s%d, v%d, 63" % (sT2, vM + 2))
    a("v_add_u32 v%d, v%d, v%d" % (vM + 0, vM + 0, vT3))
    a("s_max_u32 s%d, s%d, s%d" % (sT1, sT1, sT0))
    a("s_max_u32 s%d, s%d, s%d" % (sT2, sT2, sT1))
    a("v_max_u32 v%d, s%d, v%d" % (vM + 1, sT0, vM + 1))
    a("v_max_u32 v%d, s%d, v%d" % (vM + 2, sT1, vM + 2))
    a("v_max_u32 v%d, s%d, v%d" % (vM + 3, sT2, vM + 3))
    for i in range(1, 4):
        a("v_add_u32 v%d, v%d, v%d" % (vM + i, vM + i, vT3))
    for i in range(4):
        a("v_cmpx_ge_i32 vcc, %d, v%d" % (64 * i, vREMC))
        a("v_mov_b32 v%d, v%d" % (vM + i, vT2))
        a("s_mov_b64 exec, -1")
        a("buffer_load_ubyte v%d, v%d, %s, s%d offen offset:%d" % (vKEY + i, vM + i, sr(sWS, 4), sKEYOFF, 64 * i) + " sc1")
    for i in range(4):
        a("v_lshlrev_b32 v%d, 4, v%d" % (vRA + i, vM + i))
    if not cfg.EARLYPUB: drain("K", 4)
    def rec_loads():
        for i in range(4):
            a("buffer_load_dwordx4 %s, v%d, %s, 0 offen offset:%d sc1" % (vr(vREC + 4 * i, 4), vRA + i, sr(sWS, 4), 1024 * i))
    a("v_mov_b32 v%d, %d" % (vT1, L_PC))
    a("ds_read_b32 v%d, v%d offset:8" % (vT2, vT1))
    a("s_waitcnt lgkmcnt(0)")
    a("v_readfirstlane_b32 s%d, v%d" % (sT3, vT2))
    a("s_cmp_eq_u32 s%d, 0" % sT3)
    a("s_cbranch_scc1 K2_NOTYET")
    rec_loads()
    a("s_waitcnt vmcnt(4)")
    a("s_branch K2_LDDONE")
    a.label("K2_NOTYET")
    a("s_waitcnt vmcnt(0)")
    a.label("K2_LDDONE")
    stamp(a, cfg, 3)
    a("v_mov_b32 v%d, %d" % (vT3, L_HIST))
    for it in range(ITF):
        a("v_cmpx_lt_i32 vcc, %d, v%d" % (64 * it, vREMC))
        a("s_cbranch_execz K2_RKDONE")
        a("v_lshlrev_b32 v%d, 2, v%d" % (vKEY + it, vKEY + it))
        a("v_add_u32 v%d, v%d, v%d" % (vT2, vT3, vKEY + it))
        a("ds_add_rtn_u32 v%d, v%d, v%d" % (vRANK + it, vT2, vONE))
    a.label("K2_RKDONE")
    a("s_mov_b64 exec, -1")
    a("s_cmp_lg_u32 s%d, 0" % sT3)
    a("s_cbranch_scc1 K2_KEYED")
    a.label("K2_RSPIN")
    a("s_sleep 1")
    a("ds_read_b32 v%d, v%d offset:8" % (vT2, vT1))
    a("s_waitcnt lgkmcnt(0)")
    a("v_readfirstlane_b32 s%d, v%d" % (sT3, vT2))
    a("s_cmp_eq_u32 s%d, 0" % sT3)
    a("s_cbranch_scc1 K2_RSPIN")
    rec_loads()
    a("s_branch K2_KEYED")
    a.label("K2_NOKEY")
    if not cfg.EARLYPUB: drain("N", 0)
    a.label("K2_KEYED")
    a("v_lshlrev_b32 v%d, 2, v%d" % (vT0, vLANE))
    a("v_add_u32 v%d, %d, v%d" % (vT0, L_HIST, vT0))
    a("v_cmp_gt_u32 vcc, s%d, v%d" % (sNN, vLANE))
    a("s_waitcnt lgkmcnt(0)")
    a("s_barrier")
    stamp(a, cfg, 4)
    a("ds_read_b32 v%d, v%d" % (vCNT, vT0))
    a("s_waitcnt lgkmcnt(0)")
    a("v_add_u32 v%d, 8, v%d" % (vT0, vCNT))
    a("v_and_b32 v%d, -8, v%d" % (vT0, vT0))
    a("v_max_u32 v%d, 32, v%d" % (vT0, vT0))
    a("v_cndmask_b32 v%d, 0, v%d, vcc" % (vT0, vT0))
    a("v_mov_b32 v%d, v%d" % (vINFO, vT0))
    wave_scan(a, vINFO)
    a("s_nop 0")
    a("v_readlane_b32 s%d, v%d, 63" % (sT0, vINFO))
    a("v_sub_u32 v%d, v%d, v%d" % (vINFO, vINFO, vT0))
    a("s_cmp_le_u32 s%d, %d" % (sT0, 2000 if cfg.FORCE_SLOW == 2 else GRCAP))
    a("s_cbranch_scc1 K2_FITS")
    if cfg.FORCE_SLOW == 2:
        a("s_cmp_eq_u32 s%d, %d" % (sQCAP, QSAFE))
        a("s_cbranch_scc1 K2_FITS")
    a("s_movk_i32 s%d, %d" % (sQCAP, QSAFE))
    a("s_waitcnt vmcnt(0)")
    a("s_barrier")
    a("s_branch K2_ROUND")
    a.label("K2_FITS")
    for it in range(ITF):
        a("ds_bpermute_b32 v%d, v%d, v%d" % (vKEY + it, vKEY + it, vINFO))
    a("s_mov_b32 s%d, s%d" % (sITEM, sWAVE))
    a("s_mov_b32 s%d, 1" % xVALID)
    a("s_mov_b32 s%d, 64" % cREM)
    a("s_mov_b32 s%d, 1" % cFIRST)
    for i in range(8):
        a("v_mov_b32 v%d, v%d" % (vAD + 2 * i + 1, vC16))
    for i in (1, 3, 5, 7):
        for q in range(4):
            a("v_mov_b32 v%d, 0" % (vF + 4 * i + q))

    def al():
        if cfg.ALIGN == 1:
            a.raw(".p2align 3")
        elif cfg.ALIGN == 2:
            a.raw(".p2align 3")
            a("s_nop 0")
    def new_item():
        a("s_cmp_ge_u32 s%d, s%d" % (sITEM, sNN))
        a("s_cselect_b32 s%d, 256, 0" % xH256)
        a("s_cselect_b32 s%d, s%d, 0" % (sT0, sNN))
        a("s_sub_u32 s%d, s%d, s%d" % (xN, sITEM, sT0))
        a("v_readlane_b32 s%d, v%d, s%d" % (sT1, vINFO, xN))
        a("v_readlane_b32 s%d, v%d, s%d" % (xREM, vCNT, xN))
        a("s_lshl_b32 s%d, s%d, 10" % (sT0, xN))
        a("s_add_u32 s%d, s%d, %d" % (sT0, sT0, L_S0))
        a("s_lshl_b32 s%d, s%d, 5" % (xGA, sT1))
        a("s_add_u32 s%d, s%d, s%d" % (xLIM, sT1, xREM))
        a("s_lshl_b32 s%d, s%d, 5" % (xLIM, xLIM))
        a("s_lshl_b32 s%d, s%d, 1" % (xSA, sT1))
        a("s_add_u32 s%d, s%d, %d" % (xSA, xSA, L_SRC))
        a("s_cmp_eq_u32 s%d, 0" % xH256)
        a("s_cselect_b32 s%d, s%d, s%d" % (xSAD, sT0, xGA))
        a("s_xor_b32 s%d, s%d, s%d" % (xH256, xH256, sFLIP))
        a("s_mov_b32 s%d, 1" % xFIRST)
    def read_src():
        a("v_add_u32 v%d, s%d, v%d" % (vT + 15, xSA, vG2))
        for i in range(8):
            a("ds_read_u16 v%d, v%d offset:%d" % (vAD + 2 * i, vT + 15, 8 * i))
        if cfg.ABL & 32:
            a("s_waitcnt lgkmcnt(0)")
            for i in range(8):
                a("v_and_b32 v%d, 0x%x, v%d" % (vAD + 2 * i, cfg.AMASK, vAD + 2 * i))
    def read_g():
        a("v_add_u32 v%d, s%d, v%d" % (vT + 10, xGA, vTRO))
        a("v_add_u32 v%d, 0x200, v%d" % (vT + 11, vT + 10))
        a("v_min_u32 v%d, s%d, v%d" % (vT + 10, xLIM, vT + 10))
        a("v_min_u32 v%d, s%d, v%d" % (vT + 11, xLIM, vT + 11))
        a("ds_read_b64_tr_b16 %s, v%d" % (vr(vG, 2), vT + 10))
        a("ds_read_b64_tr_b16 %s, v%d" % (vr(vG + 2, 2), vT + 11))
    def gload(i):
        a("buffer_load_dwordx4 %s, %s, %s, s%d idxen offen" % (vr(vF + 4 * i, 4), vr(vAD + 2 * i, 2), sr(sX, 4), xH256))
    def mfmas(tag):
        a("s_cmp_eq_u32 s%d, 0" % cFIRST)
        a("s_cbranch_scc1 K2_MFACC%s" % tag)
        al()
        for j in range(8):
            a("v_mfma_f32_16x16x32_bf16 %s, %s, %s, 0" % (vr(vACC + 4 * j, 4), vr(vG, 4), vr(vPB + 4 * j, 4)))
        a("s_branch K2_MFDONE%s" % tag)
        al()
        a.label("K2_MFACC%s" % tag)
        for j in range(8):
            a("v_mfma_f32_16x16x32_bf16 %s, %s, %s, %s" % (vr(vACC + 4 * j, 4), vr(vG, 4), vr(vPB + 4 * j, 4), vr(vACC + 4 * j, 4)))
        a.label("K2_MFDONE%s" % tag)
    def epi_reads():
        a("v_mad_i32_i24 v%d, v%d, s%d, v%d" % (vT + 10, vWD, cH256, vWA0))
        a("ds_read_b64 %s, v%d offset:8" % (vr(vT + 12, 2), vNXA))
        for d in range(4):
            a("ds_read_b128 %s, v%d offset:%d" % (vr(vPB + 8 * d, 4), vT + 10, d * 1536))
            a("ds_read_b128 %s, v%d offset:%d" % (vr(vPB + 8 * d + 4, 4), vT + 10, d * 1536 + 16))
    def epi(nyounger, tag):
        a("s_and_b32 s%d, s%d, 15" % (sT0, cN))
        a("s_lshl_b32 s%d, s%d, 4" % (sT0, sT0))
        a("v_xor_b32 v%d, s%d, v%d" % (vT + 14, sT0, vC16))
        a("v_add3_u32 v%d, v%d, v%d, s%d" % (vT + 14, vT + 14, vSW, cSAD))
        a("s_waitcnt lgkmcnt(%d)" % nyounger)
        for d in range(4):
            for j in range(8):
                op = "v_mul_f32" if d == 0 else "v_fmac_f32"
                a("%s v%d, v%d, v%d" % (op, vT + j, vACC + 4 * j + d, vPB + 8 * d + j))
        for q in range(4):
            a("v_cvt_pk_bf16_f32 v%d, v%d, v%d" % (vT + 8 + q, vT + 2 * q, vT + 2 * q + 1))
        a("s_cmp_eq_u32 s%d, s%d" % (cH256, sFLIP))
        a("s_cbranch_scc1 K2_EH0%s" % tag)
        a("s_mov_b32 s%d, 0x100000" % sT1)
        a.label("K2_EH1%s" % tag)
        a("v_readfirstlane_b32 s%d, v%d" % (sT2, vT + 12))
        a("v_readfirstlane_b32 s%d, v%d" % (sT3, vT + 13))
        a("s_bitcmp1_b64 %s, s%d" % (sr(sT2, 2), cN))
        a("s_cbranch_scc1 K2_EW1%s" % tag)
        a("s_sub_u32 s%d, s%d, 1" % (sT1, sT1))
        a("s_cbranch_scc1 K2_EW1%s" % tag)
        a("s_sleep 1")
        a("ds_read_b64 %s, v%d offset:8" % (vr(vT + 12, 2), vNXA))
        a("s_waitcnt lgkmcnt(0)")
        a("s_branch K2_EH1%s" % tag)
        a.label("K2_EH0%s" % tag)
        a("s_lshl_b64 %s, 1, s%d" % (sr(sT2, 2), cN))
        a("ds_write_b128 v%d, %s" % (vT + 14, vr(vT + 8, 4)))
        a("v_mov_b32 v%d, s%d" % (vT + 12, sT2))
        a("v_mov_b32 v%d, s%d" % (vT + 13, sT3))
        a("s_mov_b64 exec, 1")
        a("ds_or_b64 v%d, %s offset:8" % (vNXA, vr(vT + 12, 2)))
        a("s_mov_b64 exec, -1")
        a("s_branch K2_EDONE%s" % tag)
        a.label("K2_EW1%s" % tag)
        a("ds_write_b128 v%d, %s" % (vT + 14, vr(vT + 8, 4)))
        a.label("K2_EDONE%s" % tag)
    def perm_block(p, align=True):
        if align: al()
        for j in range(8):
            q, sel = j >> 1, (sSELHI if j & 1 else sSELLO)
            a("v_perm_b32 v%d, v%d, v%d, s%d" % (vPB + 4 * j + p, vF + 4 * (2 * p + 1) + q, vF + 4 * (2 * p) + q, sel))

    new_item()
    a("s_mov_b32 s%d, %d" % (sT3, L_SRC))
    a("s_waitcnt lgkmcnt(0)")
    for it in range(ITF):
        k, p, r = vKEY + it, vRANK + it, vREC + 4 * it
        a("v_cmpx_lt_i32 vcc, %d, v%d" % (64 * it, vREMC))
        a("s_cbranch_execz K2_WRDONE")
        a("v_add_u32 v%d, v%d, v%d" % (k, k, p))
        a("v_lshl_add_u32 v%d, v%d, 1, s%d" % (p, k, sT3))
        a("v_lshlrev_b32 v%d, 5, v%d" % (k, k))
        a("s_waitcnt vmcnt(%d)" % (3 - it))
        a("ds_write_b16 v%d, v%d" % (p, r + 2))
    a.label("K2_WRDONE")
    a("s_mov_b64 exec, -1")
    a("s_waitcnt vmcnt(0) lgkmcnt(0)")
    a("s_barrier")
    stamp(a, cfg, 5)
    if cfg.TS:
        a("s_memtime %s" % sr(TSB + 20, 2))
        a("s_mov_b32 s%d, 0" % (TSB + 24))
    read_src()
    a("s_waitcnt lgkmcnt(0)")
    for i in range(cfg.PRE):
        a("s_cmp_le_i32 s%d, %d" % (xREM, 4 * i))
        a("s_cbranch_scc1 K2_PISSUED")
        gload(i)
    a.label("K2_PISSUED")
    a("s_cmp_lg_u32 s%d, 11" % sWAVE)
    a("s_cbranch_scc1 K2_NOZR")
    a("v_add_lshl_u32 v%d, v%d, v%d, 5" % (vT0, vINFO, vCNT))
    a("ds_write_b128 v%d, %s" % (vT0, vr(vG, 4)))
    a("ds_write_b128 v%d, %s offset:16" % (vT0, vr(vG, 4)))
    a.label("K2_NOZR")
    e, y, pr, q2 = vX, vX + 4, vX + 8, vX + 12
    for it in range(ITF):
        k, r = vKEY + it, vREC + 4 * it
        a("v_cmpx_lt_i32 vcc, %d, v%d" % (64 * it, vREMC))
        a("s_cbranch_execz K2_EXDONE")
        a("v_lshlrev_b32 v%d, 16, v%d" % (e + 0, r + 0))
        a("v_and_b32 v%d, v%d, v%d" % (e + 1, vHI, r + 0))
        a("v_lshlrev_b32 v%d, 16, v%d" % (e + 2, r + 1))
        a("v_and_b32 v%d, v%d, v%d" % (e + 3, vHI, r + 1))
        a("v_and_b32 v%d, v%d, v%d" % (y + 0, vHI, r + 2))
        a("v_lshlrev_b32 v%d, 16, v%d" % (y + 1, r + 3))
        a("v_and_b32 v%d, v%d, v%d" % (y + 2, vHI, r + 3))
        qq = q2 + 4 * (it & 1)
        for j, dst in ((0, r + 2), (1, qq), (2, qq + 2)):
            for d in range(4):
                a("v_mul_f32 v%d, v%d, v%d" % (pr + d, e + d, y + j))
            a("v_cvt_pk_bf16_f32 v%d, v%d, v%d" % (dst, pr, pr + 1))
            a("v_cvt_pk_bf16_f32 v%d, v%d, v%d" % (dst + 1, pr + 2, pr + 3))
            if j == 0:
                a("ds_write_b128 v%d, %s" % (k, vr(r, 4)))
        a("ds_write_b128 v%d, %s offset:16" % (k, vr(qq, 4)))
    a.label("K2_EXDONE")
    a("s_mov_b64 exec, -1")
    a("s_waitcnt lgkmcnt(0)")
    a("s_barrier")
    for i in range(cfg.PRE, 8):
        a("s_cmp_le_i32 s%d, %d" % (xREM, 4 * i))
        a("s_cbranch_scc1 K2_ISSUED")
        gload(i)
    a("s_branch K2_ISSUED")

    a.label("K2_TOP")
    a("s_cmp_le_i32 s%d, 28" % cREM)
    a("s_cbranch_scc1 K2_OLD")
    a("s_cmp_eq_u32 s%d, 0" % xVALID)
    a("s_cbranch_scc1 K2_OLD")
    for p in range(4):
        a("s_waitcnt vmcnt(6)")
        perm_block(p)
        if p == 0:
            a("s_waitcnt lgkmcnt(0)")
        for i in (2 * p, 2 * p + 1):
            a("s_cmp_le_i32 s%d, %d" % (xREM, 4 * i))
            a("s_cbranch_scc1 K2_X%d" % i)
            gload(i)
    a.label("K2_ISSUED")
    if cfg.TS:
        a("s_add_u32 s%d, s%d, 1" % (TSB + 24, TSB + 24))
    a("s_mov_b64 %s, %s" % (sr(pN, 2), sr(xN, 2)))
    a("s_mov_b64 %s, %s" % (sr(pFIRST, 2), sr(xFIRST, 2)))
    a("s_mov_b32 s%d, s%d" % (pSAD, xSAD))
    a("s_cmp_gt_i32 s%d, 32" % xREM)
    a("s_cbranch_scc1 K2_NOCLAIM")
    a("s_mov_b64 exec, 1")
    a("ds_add_rtn_u32 v%d, v%d, v%d" % (vNEXT, vNXA, vONE))
    a("s_mov_b64 exec, -1")
    a.label("K2_NOCLAIM")
    mfmas("")
    a("s_waitcnt lgkmcnt(0)")
    a("s_cmp_gt_i32 s%d, 32" % cREM)
    a("s_cbranch_scc1 K2_NOER")
    epi_reads()
    a.label("K2_NOER")
    read_g()
    a("s_cmp_gt_i32 s%d, 32" % xREM)
    a("s_cbranch_scc0 K2_NEWITEM")
    a("s_sub_i32 s%d, s%d, 32" % (xREM, xREM))
    a("s_add_u32 s%d, s%d, 1024" % (xGA, xGA))
    a("s_add_u32 s%d, s%d, 64" % (xSA, xSA))
    a("s_mov_b32 s%d, 0" % xFIRST)
    a.label("K2_HAVE")
    a("s_cmp_gt_i32 s%d, 32" % cREM)
    a("s_cbranch_scc1 K2_NOEPI")
    epi(2, "")
    a.label("K2_NOEPI")
    read_src()
    a("s_mov_b64 %s, %s" % (sr(cN, 2), sr(pN, 2)))
    a("s_mov_b64 %s, %s" % (sr(cFIRST, 2), sr(pFIRST, 2)))
    a("s_mov_b32 s%d, s%d" % (cSAD, pSAD))
    a("s_branch K2_TOP")
    a.label("K2_NEWITEM")
    a("v_readfirstlane_b32 s%d, v%d" % (sITEM, vNEXT))
    a("s_cmp_lt_u32 s%d, s%d" % (sITEM, sNN2))
    a("s_cselect_b32 s%d, 1, 0" % xVALID)
    a("s_cbranch_scc0 K2_HAVE")
    new_item()
    a("s_branch K2_HAVE")
    for i in range(8):
        a.label("K2_X%d" % i)
        if i & 1:
            for q in range(4):
                a("v_mov_b32 v%d, 0" % (vF + 4 * i + q))
        if i >= 6:
            a("s_branch K2_ISSUED")
        else:
            a("s_waitcnt vmcnt(%d)" % i)
            a("s_branch K2_C%d" % (i // 2 + 1))
    for p in range(1, 4):
        if p == 1: al()
        a.label("K2_C%d" % p)
        perm_block(p, False)
    a("s_branch K2_ISSUED")
    a.label("K2_OLD")
    a("s_waitcnt vmcnt(0) lgkmcnt(0)")
    for p in range(4):
        a("s_cmp_le_i32 s%d, %d" % (cREM, 8 * p))
        a("s_cbranch_scc1 K2_PZ%d" % p)
        perm_block(p)
    a.label("K2_ISSUE")
    a("s_cmp_eq_u32 s%d, 0" % xVALID)
    a("s_cbranch_scc1 K2_TAIL")
    for i in range(8):
        a("s_cmp_le_i32 s%d, %d" % (xREM, 4 * i))
        a("s_cbranch_scc1 %s" % ("K2_Z%d" % i if i & 1 else "K2_ISSUED"))
        gload(i)
    a("s_branch K2_ISSUED")
    for i in (1, 3, 5, 7):
        a.label("K2_Z%d" % i)
        for q in range(4):
            a("v_mov_b32 v%d, 0" % (vF + 4 * i + q))
        a("s_branch K2_ISSUED")
    for p in range(4):
        a.label("K2_PZ%d" % p)
        for j in range(8):
            a("v_mov_b32 v%d, 0" % (vPB + 4 * j + p))
    a("s_branch K2_ISSUE")
    a.label("K2_TAIL")
    vWT = vF
    a("v_lshlrev_b32 v%d, 4, v%d" % (vT + 0, vLANE))
    a("s_mul_i32 s%d, s%d, 10240" % (sT0, sNT))
    a("s_add_u32 s%d, s%d, 0x%x" % (sT0, sT0, WT_OFF))
    for fi in range(10):
        if cfg.ABL & 16: break
        a("buffer_load_dwordx4 %s, v%d, %s, s%d offen offset:%d" % (vr(vWT + 4 * fi, 4), vT + 0, sr(sWS, 4), sT0, (fi & 3) * 1024) + (" sc1" if cfg.WT_SC1 else ""))
        if fi & 3 == 3:
            a("s_add_u32 s%d, s%d, 4096" % (sT0, sT0))
    mfmas("T")
    epi_reads()
    epi(0, "T")

    stamp(a, cfg, 6)
    vB = vPB
    vA0, vA1 = vT, vT + 4
    vU0, vU1, vU2 = vG, vG + 1, vG + 2
    a("ds_read_b64 %s, v%d offset:8" % (vr(vT + 12, 2), vNXA))
    a("s_lshl_b32 s%d, s%d, 6" % (sT0, sMT))
    a("v_lshrrev_b32 v%d, 2, v%d" % (vU0, vC16))
    a("v_add_u32 v%d, s%d, v%d" % (vU0, sT0, vU0))
    a("ds_bpermute_b32 v%d, v%d, v%d" % (vU2, vU0, vINFO))
    a("v_xor_b32 v%d, v%d, v%d" % (vU1, vG16, vC16))
    a("v_lshlrev_b32 v%d, 8, v%d" % (vU0, vU0))
    a("v_add_u32 v%d, %d, v%d" % (vU0, L_S0, vU0))
    a("s_waitcnt lgkmcnt(0)")
    a("v_lshlrev_b32 v%d, 5, v%d" % (vU2, vU2))
    a("v_readfirstlane_b32 s%d, v%d" % (sT2, vT + 12))
    a("v_readfirstlane_b32 s%d, v%d" % (sT3, vT + 13))
    a("s_cmp_eq_u32 s%d, 0" % sFLIP)
    a("s_cbranch_scc1 K2_NOSWAP")
    a("v_swap_b32 v%d, v%d" % (vU0, vU2))
    a.label("K2_NOSWAP")
    for cmb in range(4):
        a("v_xor_b32 v%d, %d, v%d" % (vA1 + cmb, cmb * 64, vU1))
        a("v_add_u32 v%d, v%d, v%d" % (vA0 + cmb, vA1 + cmb, vU0))
        a("v_add_u32 v%d, v%d, v%d" % (vA1 + cmb, vA1 + cmb, vU2))
    def s2_half(h, first):
        seq = []
        for o in range(4):
            for jp in range(4):
                if ((jp ^ o) >> 1) == h:
                    for ch in range(2):
                        seq.append((o, jp, ch))
        for idx, (o, jp, ch) in enumerate(seq):
            l = jp ^ o
            if idx == 15:
                a("s_waitcnt lgkmcnt(14)")
            a("ds_read_b128 %s, v%d offset:%d" % (vr(vB + 4 * idx, 4), (vA1 if h else vA0) + (l & 1) * 2 + ch, jp * 256))
        if first:
            a("s_waitcnt vmcnt(0)")
        for idx, (o, jp, ch) in enumerate(seq):
            a("s_waitcnt lgkmcnt(%d)" % (15 - idx))
            a("v_mfma_f32_16x16x32_bf16 %s, %s, %s, %s" % (vr(vOA + 4 * o, 4), vr(vWT + 8 * wmat(o, jp) + 4 * ch, 4), vr(vB + 4 * idx, 4), vr(vOA + 4 * o, 4)))
    sPH, sSTEP, sBAR = xGA, xLIM, xSA
    a("s_bcnt1_i32_b64 s%d, %s" % (sT1, sr(sT2, 2)))
    a("s_mov_b32 s%d, s%d" % (sPH, sFLIP))
    a("s_mov_b32 s%d, 0" % sSTEP)
    a("s_mov_b32 s%d, 0" % sBAR)
    a("s_cmp_eq_u32 s%d, s%d" % (sT1, sNN))
    a("s_cbranch_scc1 K2_S2RUN")
    a("s_barrier")
    a("s_mov_b32 s%d, 1" % sBAR)
    a.label("K2_S2RUN")
    a("s_cmp_lg_u32 s%d, 0" % sPH)
    a("s_cbranch_scc1 K2_S2H1")
    s2_half(0, True)
    a("s_branch K2_S2AFT")
    a.label("K2_S2H1")
    s2_half(1, True)
    a.label("K2_S2AFT")
    a("s_cmp_lg_u32 s%d, 0" % sSTEP)
    a("s_cbranch_scc1 K2_S2END")
    a("s_mov_b32 s%d, 1" % sSTEP)
    a("s_xor_b32 s%d, s%d, 256" % (sPH, sPH))
    a("s_cmp_lg_u32 s%d, 0" % sBAR)
    a("s_cbranch_scc1 K2_S2RUN")
    a("s_barrier")
    stamp(a, cfg, 7)
    if cfg.TS:
        a("s_memtime %s" % sr(TSB + 22, 2))
    a("s_branch K2_S2RUN")
    a.label("K2_S2END")
    a("s_cmp_eq_u32 s%d, 0" % sMORE)
    a("s_cbranch_scc1 K2_FINAL")
    a("s_add_u32 s%d, s%d, s%d" % (sROFF, sROFF, sQCAP))
    a("s_barrier")
    a("s_branch K2_ROUND")
    a.label("K2_FINAL")
    a("s_mul_i32 s%d, s%d, %d" % (sT0, sMT, 16 * 528))
    a("s_lshl_b32 s%d, s%d, 5" % (sT1, sNT))
    a("s_add_u32 s%d, s%d, s%d" % (sT0, sT0, sT1))
    a("s_add_u32 s%d, s%d, %d" % (sT0, sT0, L_OUT))
    a("v_mul_u32_u24 v%d, 33, v%d" % (vU0, vC16))
    a("v_lshrrev_b32 v%d, 1, v%d" % (vU1, vG16))
    a("v_add3_u32 v%d, v%d, v%d, s%d" % (vU0, vU0, vU1, sT0))
    a("v_lshrrev_b32 v%d, 5, v0" % vU1)
    a("v_and_b32 v%d, 31, v0" % vU2)
    a("v_mul_u32_u24 v%d, 528, v%d" % (vA0, vU1))
    a("v_lshl_add_u32 v%d, v%d, 4, v%d" % (vA0, vU2, vA0))
    a("v_add_u32 v%d, %d, v%d" % (vA0, L_OUT, vA0))
    a("v_lshlrev_b32 v%d, 4, v0" % (vA0 + 1))
    a("s_mov_b32 s%d, 0xbfb8aa3b" % sT0)
    vE = vF
    for r in range(4):
        a("v_mul_f32 v%d, s%d, v%d" % (vE + r, sT0, vOA + r))
    for r in range(4):
        a("v_exp_f32 v%d, v%d" % (vE + r, vE + r))
    for r in range(4):
        a("v_add_f32 v%d, 1.0, v%d" % (vE + r, vE + r))
    for r in range(4):
        a("v_rcp_f32 v%d, v%d" % (vE + r, vE + r))
    a("v_cvt_pk_bf16_f32 v%d, v%d, v%d" % (vE + 8, vOA + 0, vOA + 1))
    a("v_cvt_pk_bf16_f32 v%d, v%d, v%d" % (vE + 9, vOA + 2, vOA + 3))
    for o in range(1, 4):
        for r in range(4):
            a("v_mul_f32 v%d, v%d, v%d" % (vOA + 4 * o + r, vOA + 4 * o + r, vE + r))
        a("v_cvt_pk_bf16_f32 v%d, v%d, v%d" % (vE + 8 + 2 * o, vOA + 4 * o, vOA + 4 * o + 1))
        a("v_cvt_pk_bf16_f32 v%d, v%d, v%d" % (vE + 9 + 2 * o, vOA + 4 * o + 2, vOA + 4 * o + 3))
    for o in range(4):
        a("ds_write_b64 v%d, %s offset:%d" % (vU0, vr(vE + 8 + 2 * o, 2), o * 128))
    a("s_lshl_b32 s%d, s%d, 9" % (sT0, sNODE0))
    a("s_add_u32 s%d, s%d, s%d" % (sOUT, sOUT, sT0))
    a("s_addc_u32 s%d, s%d, 0" % (sOUT + 1, sOUT + 1))
    a("s_lshl_b32 s%d, s%d, 9" % (sOUT + 2, sNN))
    a("v_add_u32 v%d, %d, v%d" % (vA0 + 2, 768 * 16, vA0 + 1))
    a("s_waitcnt lgkmcnt(0)")
    a("s_barrier")
    ost = ["", " sc1", " nt", " sc0 sc1"][cfg.OUT_ST]
    a("ds_read_b128 %s, v%d" % (vr(vE, 4), vA0))
    a("s_cmp_ge_u32 s%d, 8" % sWAVE)
    a("s_cbranch_scc1 K2_ST1")
    a("ds_read_b128 %s, v%d offset:%d" % (vr(vE + 4, 4), vA0, 24 * 528))
    a("s_waitcnt lgkmcnt(0)")
    a("buffer_store_dwordx4 %s, v%d, %s, 0 offen" % (vr(vE + 4, 4), vA0 + 2, sr(sOUT, 4)) + ost)
    a.label("K2_ST1")
    a("s_waitcnt lgkmcnt(0)")
    a("buffer_store_dwordx4 %s, v%d, %s, 0 offen" % (vr(vE, 4), vA0 + 1, sr(sOUT, 4)) + ost)
    if cfg.TS:
        stamp(a, cfg, 8)
        a("s_waitcnt vmcnt(0)")
        stamp(a, cfg, 9)
        stamp_flush(a, cfg, 1, 16, sWS, 164, 165, sT0)
    a.label("K2_END")
    a("s_endpgm")
    a.label("CODE_END")
    return lds

def kd(name, vgpr, sgpr):
    acc = (vgpr + 3) // 4 * 4
    return """.p2align 6
.amdhsa_kernel %s
  .amdhsa_next_free_vgpr %d
  .amdhsa_next_free_sgpr %d
  .amdhsa_accum_offset %d
  .amdhsa_group_segment_fixed_size 0
  .amdhsa_kernarg_size 96
  .amdhsa_user_sgpr_count 2
  .amdhsa_user_sgpr_kernarg_segment_ptr 1
  .amdhsa_system_sgpr_workgroup_id_x 1
  .amdhsa_float_denorm_mode_32 3
.end_amdhsa_kernel
""" % (name, vgpr, sgpr, acc)

def build(cfg):
    a = Asm()
    lds2 = gen_k2(a, cfg)
    hdr = open("cdna_kernels/%s.s.ref" % NAME).read().split("\n")
    head = [l for l in hdr if l.startswith(";") and "@launch" not in l]
    out = "\n".join(head) + "\n"
    out += "; @launch grid=(%d,1,1) block=(768,1,1) lds=%d\n" % (NB, lds2)
    out += '.amdgcn_target "amdgcn-amd-amdhsa--gfx950"\n.text\n'
    out += a.text()
    out += '.section .rodata,"a"\n'
    out += kd(NAME + "_kernel", 166, 100 if cfg.TS else 64)
    return out

if __name__ == "__main__":
    cfg = Cfg()
    outp = "cdna_kernels/%s.s" % NAME
    for arg in sys.argv[1:]:
        if "=" in arg:
            k, v = arg.split("=")
            assert hasattr(cfg, k), k
            setattr(cfg, k, int(v))
        else:
            outp = arg
    open(outp, "w").write(build(cfg))
    print("wrote", outp)
```

```python
import sys

NAME = "standalone__tensor_product_equiv_equiformer__graph"

class Cfg:
    TS = 0
    FORCE_SLOW = 0
    ABL = 0
    AMASK = 0x7ff
    PRE = 4
    ALIGN = 1
    OUT_ST = 2
    K1_LD = 1
    WT_SC1 = 0
    RECST = 0
    SLEEP = 1
    THR = 0
    WTPOS = 2
    B1M = 0
    DIRB = 0
    WPOS = 1
    LATEK = 12
    S2ORD = 0
    STSPLIT = 0
    XPRE = 0
    FLIP = 4
    PFN = 0
    SPOLL = 0
    NGO = 16
    EARLYPUB = 1
    SLEEPB = 1

NCH = 250
NB = 256
NPB = 40
CH = 2560
REC_OFF = 0
KEY_OFF = 0x9D0000
TAB_OFF = 0xA80000
WT_OFF = 0xAC0000
FLAG_OFF = 0xAD0000
EPOCH_OFF = 0xAE0000
TS_OFF = 0xD00000
SPILL_OFF = 0x1000000
WS_BYTES = 0x2000000

class Asm:
    def __init__(self):
        self.l = []
    def __call__(self, s):
        self.l.append("    " + s)
    def label(self, s):
        self.l.append(s + ":")
    def raw(self, s):
        self.l.append(s)
    def text(self):
        return "\n".join(self.l) + "\n"

def vr(a, n):
    return "v[%d:%d]" % (a, a + n - 1)
def sr(a, n):
    return "s[%d:%d]" % (a, a + n - 1)

def wave_scan(a, v):
    for m in ("row_shr:1 row_mask:0xf", "row_shr:2 row_mask:0xf", "row_shr:4 row_mask:0xf",
              "row_shr:8 row_mask:0xf", "row_bcast:15 row_mask:0xa", "row_bcast:31 row_mask:0xc"):
        a("s_nop 1")
        a("v_add_u32_dpp v%d, v%d, v%d %s bank_mask:0xf" % (v, v, v, m))

TSB = 64
def stamp(a, cfg, idx):
    if cfg.TS:
        a("s_memrealtime %s" % sr(TSB + 2 * idx, 2))

def stamp_flush(a, cfg, kern, n, s_ws, va, vb, s_tmp):
    if not cfg.TS:
        return
    a("s_mov_b64 exec, -1")
    a("s_lshl_b32 s%d, s2, 10" % s_tmp)
    a("s_add_u32 s%d, s%d, 0x%x" % (s_tmp, s_tmp, TS_OFF + kern * 0x40000))
    a("v_lshrrev_b32 v%d, 6, v0" % va)
    a("v_lshlrev_b32 v%d, 6, v%d" % (va, va))
    a("v_add_u32 v%d, s%d, v%d" % (va, s_tmp, va))
    a("s_waitcnt lgkmcnt(0)")
    for i in range(n):
        a("v_mov_b32 v%d, s%d" % (vb, TSB + 2 * i))
        a("global_store_dword v%d, v%d, %s offset:%d" % (va, vb, sr(s_ws, 2), i * 4))

def publish(a, sWS, sTAG, off, va, vb, st):
    a("s_lshl_b32 s%d, s2, 2" % st)
    a("s_add_u32 s%d, s%d, 0x%x" % (st, st, off))
    a("v_mov_b32 v%d, 0" % vb)
    a("v_mov_b32 v%d, s%d" % (vb + 1, sTAG))
    a("s_mov_b64 exec, 1")
    a("buffer_store_dword v%d, v%d, %s, s%d offen sc1" % (vb + 1, vb, sr(sWS, 4), st))
    a("s_mov_b64 exec, -1")

def poll(a, cfg, tag, sWS, sTAG, off, va, vb, st, go=None):
    a("v_mov_b32 v%d, s%d" % (vb + 1, sTAG))
    a("s_mov_b32 s%d, 0x40000" % (st + 1))
    direct = cfg.DIRB and tag == "B"
    if not direct:
        a("s_cmp_lg_u32 s2, %d" % (NB - 1))
        a("s_cbranch_scc1 POLLG%s" % tag)
    a("s_mov_b32 s%d, 0x%x" % (st, off))
    a("s_movk_i32 s%d, %d" % (st + 3, cfg.THR))
    a("v_lshlrev_b32 v%d, 4, v%d" % (vb, va))
    a.label("POLL%s" % tag)
    a("buffer_load_dwordx4 %s, v%d, %s, s%d offen sc1" % (vr(vb + 2, 4), vb, sr(sWS, 4), st))
    a("s_waitcnt vmcnt(0)")
    for k in range(4):
        a("v_xor_b32 v%d, v%d, v%d" % (vb + 2 + k, vb + 1, vb + 2 + k))
    a("v_or3_b32 v%d, v%d, v%d, v%d" % (vb + 2, vb + 2, vb + 3, vb + 4))
    a("v_or_b32 v%d, v%d, v%d" % (vb + 2, vb + 2, vb + 5))
    a("v_cmp_ne_u32 vcc, 0, v%d" % (vb + 2))
    a("s_cbranch_vccz POLLW%s" % tag)
    if go is not None and 0 < cfg.THR < 64:
        a("v_cmp_eq_u32 vcc, 0, v%d" % (vb + 3))
        a("s_bcnt1_i32_b64 s%d, vcc" % (st + 2))
        a("s_cmp_lt_u32 s%d, s%d" % (st + 2, st + 3))
        a("s_cbranch_scc1 POLLN%s" % tag)
        a("s_movk_i32 s%d, 100" % (st + 3))
        a("v_lshlrev_b32 v%d, 8, v%d" % (vb + 2, va))
        a("s_mov_b64 exec, 0x%x" % ((1 << cfg.NGO) - 1))
        a("buffer_store_dword v%d, v%d, %s, s%d offen offset:1028 sc1" % (vb + 1, vb + 2, sr(sWS, 4), st))
        a("s_mov_b64 exec, -1")
        a.label("POLLN%s" % tag)
    if direct:
        a("s_sleep %d" % cfg.DIRB)
    a("s_sub_u32 s%d, s%d, 1" % (st + 1, st + 1))
    a("s_cbranch_scc0 POLL%s" % tag)
    a.label("POLLW%s" % tag)
    if direct:
        return
    a("v_lshlrev_b32 v%d, 8, v%d" % (vb, va))
    a("s_mov_b64 exec, 0x%x" % ((1 << cfg.NGO) - 1))
    a("buffer_store_dword v%d, v%d, %s, s%d offen offset:1024 sc1" % (vb + 1, vb, sr(sWS, 4), st))
    a("s_mov_b64 exec, -1")
    a("s_branch POLLED%s" % tag)
    a.label("POLLG%s" % tag)
    a("s_and_b32 s%d, s2, %d" % (st, cfg.NGO - 1))
    a("s_lshl_b32 s%d, s%d, 8" % (st, st))
    a("s_add_u32 s%d, s%d, 0x%x" % (st, st, off + 1024))
    if cfg.SPOLL:
        a("s_add_u32 s40, s%d, s%d" % (sWS, st))
        a("s_addc_u32 s41, s%d, 0" % (sWS + 1))
        a.label("POLLS%s" % tag)
        a("s_load_dwordx2 s[36:37], s[40:41], 0 glc")
        a("s_waitcnt lgkmcnt(0)")
        a("s_cmp_eq_u32 s36, s%d" % sTAG)
        a("s_cbranch_scc1 POLLED%s" % tag)
        if go is not None and 0 < cfg.THR < 64:
            a("s_cmp_lg_u32 s37, s%d" % sTAG)
            a("s_cbranch_scc1 POLLT%s" % tag)
            a("ds_write_b32 v%d, v%d offset:12" % go)
            a.label("POLLT%s" % tag)
        a("s_sub_u32 s%d, s%d, 1" % (st + 1, st + 1))
        a("s_cbranch_scc1 POLLED%s" % tag)
        a("s_sleep %d" % (cfg.SLEEP if tag == "A" else cfg.SLEEPB))
        a("s_branch POLLS%s" % tag)
    a("v_mov_b32 v%d, 0" % vb)
    a("s_mov_b64 exec, 1")
    a.label("POLLH%s" % tag)
    a("buffer_load_dwordx2 %s, v%d, %s, s%d offen sc1" % (vr(vb + 2, 2), vb, sr(sWS, 4), st))
    a("s_waitcnt vmcnt(0)")
    a("v_cmp_ne_u32 vcc, v%d, v%d" % (vb + 1, vb + 2))
    a("s_cbranch_vccz POLLX%s" % tag)
    if go is not None and 0 < cfg.THR < 64:
        a("v_cmp_ne_u32 vcc, v%d, v%d" % (vb + 1, vb + 3))
        a("s_cbranch_vccnz POLLM%s" % tag)
        a("ds_write_b32 v%d, v%d offset:12" % go)
        a.label("POLLM%s" % tag)
    a("s_sub_u32 s%d, s%d, 1" % (st + 1, st + 1))
    a("s_cbranch_scc1 POLLX%s" % tag)
    a("s_sleep %d" % (cfg.SLEEP if tag == "A" else cfg.SLEEPB))
    a("s_branch POLLH%s" % tag)
    a.label("POLLX%s" % tag)
    a("s_mov_b64 exec, -1")
    a.label("POLLED%s" % tag)

def gen_producer(a, cfg, sWS, sWAVE, sWR, L_WR, sTAG, L_TAB, L_PC, sB):
    L_BASE = 1024
    L_REC = 12288
    L_KEY = L_REC + CH * 16
    ws = sr(sWS, 2)
    ld = " nt" if cfg.K1_LD else ""
    st = " sc1"
    def tag_load():
        a("s_add_u32 s40, s%d, 0x%x" % (sWS, EPOCH_OFF))
        a("s_addc_u32 s41, s%d, 0" % (sWS + 1))
        a("s_load_dword s%d, s[40:41], 0" % sTAG)
    def scan4():
        a("v_add_u32 v49, v44, v45")
        a("v_add_u32 v50, v49, v46")
        a("v_add_u32 v51, v50, v47")
        a("v_mov_b32 v52, v51")
        wave_scan(a, 52)
        a("v_sub_u32 v52, v52, v51")
        a("v_add_u32 v53, v52, v44")
        a("v_add_u32 v54, v52, v49")
        a("v_add_u32 v55, v52, v50")
    a("v_and_b32 v31, 63, v0")
    a("v_lshlrev_b32 v5, 2, v0")
    a("v_mov_b32 v6, 0")
    a("ds_write_b32 v5, v6")
    a("v_lshlrev_b32 v43, 4, v31")
    a("s_cmp_eq_u32 s%d, 10" % sWAVE)
    a("s_cbranch_scc1 P_W10")
    a("s_cmp_eq_u32 s%d, 11" % sWAVE)
    a("s_cbranch_scc1 P_W11")
    a("s_cmp_ge_u32 s2, %d" % NCH)
    a("s_cbranch_scc1 P_EXTRA")
    a("s_mul_i32 s32, s2, 640")
    a("v_add_u32 v1, s32, v0")
    a("v_lshlrev_b32 v2, 4, v1")
    a("v_lshlrev_b32 v3, 5, v1")
    a("v_mul_u32_u24 v4, 24, v1")
    a("s_movk_i32 s33, 625")
    a("v_lshlrev_b32 v40, 4, v0")
    a("s_waitcnt lgkmcnt(0)")
    a("v_mov_b32 v6, 1")
    a("global_load_dwordx4 v[8:11], v2, s[30:31]" + ld)
    tag_load()
    a("s_barrier")
    a("global_load_dwordx4 v[12:15], v2, s[28:29]" + ld)
    a("global_load_dwordx4 v[16:19], v3, s[26:27]" + ld)
    a("global_load_dwordx4 v[20:23], v3, s[26:27] offset:16" + ld)
    a("global_load_dwordx4 v[24:27], v4, s[24:25]" + ld)
    a("global_load_dwordx2 v[28:29], v4, s[24:25] offset:16" + ld)
    a("s_waitcnt vmcnt(5)")
    for k in range(4):
        a("v_mul_u32_u24 v%d, 429497, v%d" % (32 + k, 8 + k))
        a("v_lshrrev_b32 v%d, 24, v%d" % (32 + k, 32 + k))
        a("v_mad_u32_u24 v41, v%d, s33, 15" % (32 + k))
        a("v_lshlrev_b32 v%d, 2, v%d" % (32 + k, 32 + k))
        a("ds_add_rtn_u32 v%d, v%d, v6" % (36 + k, 32 + k))
        a("v_lshrrev_b32 v41, 4, v41")
        a("v_sub_u32 v%d, v%d, v41" % (8 + k, 8 + k))
    a("s_lshl_b32 s35, s%d, 10" % sWAVE)
    a("s_waitcnt lgkmcnt(0)")
    a("s_barrier")
    a("ds_read_b128 v[44:47], v43")
    a("v_add_u32 v42, s35, v43")
    for k in range(4):
        a("v_add_u32 v%d, s35, v%d" % (32 + k, 32 + k))
    a("s_waitcnt lgkmcnt(0)")
    scan4()
    a("ds_write_b128 v42, v[52:55] offset:%d" % L_BASE)
    for k in range(4):
        a("ds_read_b32 v%d, v%d offset:%d" % (32 + k, 32 + k, L_BASE))
    a("s_waitcnt lgkmcnt(0)")
    for k in range(4):
        a("v_add_u32 v%d, v%d, v%d" % (32 + k, 32 + k, 36 + k))
        a("ds_write_b8 v%d, v%d offset:%d" % (32 + k, 8 + k, L_KEY))
        a("v_lshlrev_b32 v%d, 4, v%d" % (36 + k, 32 + k))
    a("s_waitcnt lgkmcnt(0)")
    a("s_barrier")
    a("s_mov_b32 s34, 0x05040100")
    a("s_mov_b32 s35, 0x07060100")
    a("s_waitcnt vmcnt(0)")
    stamp(a, cfg, 13)
    a("v_mov_b32 v44, v16")
    a("v_mov_b32 v45, v17")
    a("v_perm_b32 v46, v24, v12, s34")
    a("v_alignbit_b32 v47, v25, v24, 16")
    a("ds_write_b128 v36, v[44:47] offset:%d" % L_REC)
    a("v_mov_b32 v48, v18")
    a("v_mov_b32 v49, v19")
    a("v_perm_b32 v50, v25, v13, s35")
    a("v_mov_b32 v51, v26")
    a("ds_write_b128 v37, v[48:51] offset:%d" % L_REC)
    a("v_mov_b32 v16, v20")
    a("v_mov_b32 v17, v21")
    a("v_perm_b32 v18, v27, v14, s34")
    a("v_alignbit_b32 v19, v28, v27, 16")
    a("ds_write_b128 v38, v[16:19] offset:%d" % L_REC)
    a("v_perm_b32 v24, v28, v15, s35")
    a("v_mov_b32 v25, v29")
    a("ds_write_b128 v39, v[22:25] offset:%d" % L_REC)
    a("v_mov_b32 v7, %d" % L_PC)
    a("s_mov_b64 exec, 1")
    a("ds_add_u32 v7, v6 offset:4")
    a("s_mov_b64 exec, -1")
    a.label("P_SPIN")
    a("s_sleep 1")
    a("ds_read_b32 v61, v7 offset:4")
    a("s_waitcnt lgkmcnt(0)")
    a("v_readfirstlane_b32 s32, v61")
    a("s_cmp_lt_u32 s32, 10")
    a("s_cbranch_scc1 P_SPIN")
    for k in range(4):
        a("ds_read_b128 %s, v40 offset:%d" % (vr(64 + 4 * k, 4), L_REC + k * 10240))
    a("s_branch P_DONE")
    a.label("P_W10")
    a("s_lshl_b32 s32, s2, 10")
    a("s_add_u32 s32, s32, 0x%x" % TAB_OFF)
    a("v_add_u32 v56, s32, v43")
    a("s_mul_i32 s32, s2, %d" % CH)
    a("s_add_u32 s32, s32, 0x%x" % KEY_OFF)
    a("v_add_u32 v57, s32, v43")
    a("s_waitcnt lgkmcnt(0)")
    tag_load()
    a("s_barrier")
    a("s_barrier")
    a("ds_read_b128 v[44:47], v43")
    a("s_waitcnt lgkmcnt(0)")
    scan4()
    for k in range(4):
        a("v_lshl_or_b32 v%d, v%d, 16, v%d" % (52 + k, 44 + k, 52 + k))
    a("global_store_dwordx4 v56, v[52:55], %s" % ws + st)
    a("s_add_u32 s%d, s%d, 1" % (sTAG, sTAG))
    a("s_barrier")
    a("s_cmp_ge_u32 s2, %d" % NCH)
    a("s_cbranch_scc1 P_NOKEYS")
    for k in range(3):
        a("ds_read_b128 %s, v43 offset:%d" % (vr(64 + 4 * k, 4), L_KEY + k * 1024))
    a("s_waitcnt lgkmcnt(0)")
    a("global_store_dwordx4 v57, v[64:67], %s" % ws + st)
    a("global_store_dwordx4 v57, v[68:71], %s offset:1024" % ws + st)
    a("s_mov_b32 exec_hi, 0")
    a("global_store_dwordx4 v57, v[72:75], %s offset:2048" % ws + st)
    a("s_mov_b64 exec, -1")
    a.label("P_NOKEYS")
    a("s_waitcnt vmcnt(0)")
    publish(a, sWS, sTAG, FLAG_OFF, 31, 60, 32)
    if cfg.THR >= 100:
        if cfg.THR == 101:
            a("s_waitcnt vmcnt(0)")
        a("v_mov_b32 v7, %d" % L_PC)
        a("v_mov_b32 v6, 1")
        a("ds_write_b32 v7, v6 offset:12")
    stamp(a, cfg, 13)
    a("s_branch P_DONE2")
    a.label("P_W11")
    a("v_lshrrev_b32 v2, 3, v31")
    a("v_min_u32 v2, 4, v2")
    a("v_lshlrev_b32 v2, 7, v2")
    a("v_and_b32 v3, 7, v0")
    a("v_lshl_add_u32 v2, v3, 4, v2")
    a("v_cmp_le_u32 vcc, 40, v31")
    a("v_mov_b32 v7, %d" % L_PC)
    a("ds_write_b32 v7, v6")
    a("ds_write_b32 v7, v6 offset:4")
    a("ds_write_b32 v7, v6 offset:8")
    a("ds_write_b32 v7, v6 offset:12")
    a("v_mov_b32 v4, 0x80008000")
    a("v_cndmask_b32 v4, 0, v4, vcc")
    a("v_lshlrev_b32 v3, 5, v31")
    a("v_add_u32 v3, %d, v3" % L_WR)
    a("v_mov_b32 v5, 0xffff0000")
    a("s_waitcnt lgkmcnt(0)")
    tag_load()
    for d in range(4):
        a("global_load_dwordx4 %s, v2, %s offset:%d" % (vr(8 + 4 * d, 4), sr(sWR, 2), d * 640))
    a("s_barrier")
    a("s_barrier")
    a("s_waitcnt lgkmcnt(0)")
    a("s_barrier")
    a("s_waitcnt vmcnt(0)")
    for q in range(16):
        a("v_xor_b32 v%d, v4, v%d" % (8 + q, 8 + q))
        a("v_lshlrev_b32 v%d, 16, v%d" % (64 + 2 * q, 8 + q))
        a("v_and_b32 v%d, v5, v%d" % (65 + 2 * q, 8 + q))
    a("s_mov_b32 exec_hi, 0xffff")
    for d in range(4):
        a("ds_write_b128 v3, %s offset:%d" % (vr(64 + 8 * d, 4), d * 1536))
        a("ds_write_b128 v3, %s offset:%d" % (vr(68 + 8 * d, 4), d * 1536 + 16))
    a("s_mov_b64 exec, -1")
    a("s_waitcnt lgkmcnt(0)")
    a("s_add_u32 s%d, s%d, 1" % (sTAG, sTAG))
    a("s_branch P_DONE2")
    a.label("P_EXTRA")
    a("s_waitcnt lgkmcnt(0)")
    tag_load()
    for i in range(3):
        a("s_barrier")
    a.label("P_DONE")
    a("s_waitcnt lgkmcnt(0)")
    a("s_add_u32 s%d, s%d, 1" % (sTAG, sTAG))
    a.label("P_DONE2")

def path6(g, l):
    if g == 0 and l == 0: return 0
    if g == l: return 1
    if l == 0: return 2
    if g == 0: return 3
    return 4 if (g, l) in ((2, 3), (3, 1), (1, 2)) else 5

def wmat(o, jp):
    if o == 0:
        return 0 if jp == 0 else 1
    if jp == o: return 2
    if jp == 0: return 3
    return 4

def gen_k2(a, cfg):
    NW = 12
    GRCAP = 3168
    QFAST, QSAFE = 3072, 1792
    L_S0 = GRCAP * 32
    L_WIN = L_S0
    L_SRC = L_S0 + NPB * 1024
    L_HIST = L_SRC + 6400
    L_NEXT = L_HIST + 256
    L_WR = L_HIST + 512
    L_OUT = L_SRC
    L_TAB = L_WR + 6144
    L_PC = L_TAB + 1024
    lds = 163840
    assert L_WR + 6144 <= lds and L_OUT + NPB * 528 <= lds
    ITF = 4
    sX, sWS, sOUT, sWR = 4, 8, 12, 16
    sWAVE, sROFF, sTOT, sB, sMORE, sITEM = 18, 19, 20, 21, 22, 23
    xN, xH256, xFIRST, xREM = 24, 25, 26, 27
    pN, pH256, pFIRST, pREM = 28, 29, 30, 31
    cN, cH256, cFIRST, cREM = 32, 33, 34, 35
    xSAD, pSAD, cSAD, xVALID = 36, 37, 38, 39
    xGA, xLIM, xSA, sQCAP = 40, 41, 42, 43
    sT0, sT1, sT2, sT3 = 44, 45, 46, 47
    sKEYOFF, sHI16, sSELLO, sSELHI = 48, 49, 50, 51
    sSV = 52
    sNN, sNN2, sNODE0 = 54, 55, 56
    sCK = 56
    sMT, sNT = 60, 61
    sTAG, sFIRSTR = 62, 63
    sFLIP = 3
    vTID, vG16, vTRO, vG2, vINFO, vCNT, vNEXT, vSW, vONE, vWA0, vWD, vNXA = range(12)
    vG = 12
    vF = 16
    vAD = 48
    vC16 = vAD + 1
    vPB = 64
    vACC = 96
    vWT = 128
    vREC, vKEY, vRANK, vTAB, vPRE, vLEN, vDEL, vM, vRA = 64, 80, 84, 40, 44, 48, 52, 56, 60
    vX = 108
    vREMC, vT0, vT1, vT2, vT3, vHI, vLANE = range(88, 95)
    L_WST = 57344
    scan = ("row_shr:1 row_mask:0xf", "row_shr:2 row_mask:0xf", "row_shr:4 row_mask:0xf",
            "row_shr:8 row_mask:0xf", "row_bcast:15 row_mask:0xa", "row_bcast:31 row_mask:0xc")

    a.raw(".p2align 8")
    a.raw(".globl %s_kernel" % NAME)
    a.raw(".type %s_kernel,@function" % NAME)
    a.label("%s_kernel" % NAME)
    a("s_cmp_ge_u32 s2, %d" % NB)
    a("s_cbranch_scc1 K2_END")
    stamp(a, cfg, 0)
    a("s_load_dwordx4 s[28:31], s[0:1], 24")
    a("s_load_dwordx4 s[24:27], s[0:1], 8")
    a("s_load_dwordx2 %s, s[0:1], 88" % sr(sWS, 2))
    a("s_load_dwordx2 %s, s[0:1], 0" % sr(sX, 2))
    a("s_load_dwordx2 %s, s[0:1], 72" % sr(sOUT, 2))
    a("s_load_dwordx2 %s, s[0:1], 40" % sr(sWR, 2))
    a("v_lshrrev_b32 v1, 6, v0")
    a("s_nop 0")
    a("v_readfirstlane_b32 s%d, v1" % sWAVE)
    a("s_movk_i32 s%d, 10000" % (sX + 2))
    a("s_mov_b32 s%d, 0x20000" % (sX + 3))
    a("s_mov_b32 s%d, 0x%x" % (sWS + 2, WS_BYTES))
    a("s_mov_b32 s%d, 0x20000" % (sWS + 3))
    a("s_mov_b32 s%d, 0" % (sOUT + 2))
    a("s_mov_b32 s%d, 0x20000" % (sOUT + 3))
    a("s_and_b32 s%d, s2, 7" % sB)
    a("s_lshl_b32 s%d, s%d, 5" % (sB, sB))
    a("s_lshr_b32 s%d, s2, 3" % sT0)
    a("s_add_u32 s%d, s%d, s%d" % (sB, sB, sT0))
    gen_producer(a, cfg, sWS, sWAVE, sWR, L_WR, sTAG, L_TAB, L_PC, sB)
    a("v_and_b32 v%d, 63, v0" % vLANE)
    a("s_mov_b32 s%d, 1" % sFIRSTR)
    if cfg.FLIP:
        a("s_and_b32 s%d, s2, %d" % (sFLIP, cfg.FLIP))
        a("s_cmp_lg_u32 s%d, 0" % sFLIP)
        a("s_cselect_b32 s%d, 256, 0" % sFLIP)
    else:
        a("s_mov_b32 s%d, 0" % sFLIP)
    a("s_or_b32 s%d, s%d, 0x%x" % (sX + 1, sX + 1, 512 << 16))
    a("v_lshrrev_b32 v%d, 3, v%d" % (vT2, vLANE))
    a("v_and_b32 v%d, 7, v0" % vT0)
    a("s_mov_b32 s%d, 0x05040100" % sSELLO)
    a("s_mov_b32 s%d, 0x07060302" % sSELHI)
    a("s_mov_b32 s%d, 0x%x" % (sKEYOFF, KEY_OFF))
    a("s_mov_b32 s%d, 0xffff0000" % sHI16)
    a("s_mov_b32 s%d, 0" % sROFF)
    a("s_movk_i32 s%d, %d" % (sQCAP, 768 if cfg.FORCE_SLOW == 1 else QFAST))
    for k in range(1, 4):
        a("s_movk_i32 s%d, %d" % (sCK + k, k * CH))
    a("s_mul_i32 s%d, s%d, 625" % (sNODE0, sB))
    a("s_add_u32 s%d, s%d, %d" % (sNN, sNODE0, 625 + 15))
    a("s_add_u32 s%d, s%d, 15" % (sNODE0, sNODE0))
    a("s_lshr_b32 s%d, s%d, 4" % (sNODE0, sNODE0))
    a("s_lshr_b32 s%d, s%d, 4" % (sNN, sNN))
    a("s_sub_u32 s%d, s%d, s%d" % (sNN, sNN, sNODE0))
    a("s_lshl_b32 s%d, s%d, 1" % (sNN2, sNN))
    a("s_lshr_b32 s%d, s%d, 2" % (sMT, sWAVE))
    a("s_and_b32 s%d, s%d, 3" % (sNT, sWAVE))
    a("v_and_b32 v%d, 48, v0" % vG16)
    a("v_bfe_u32 v%d, v0, 2, 2" % vT1)
    a("v_lshlrev_b32 v%d, 7, v%d" % (vTRO, vT1))
    a("v_lshl_add_u32 v%d, v%d, 1, v%d" % (vTRO, vG16, vTRO))
    a("v_and_b32 v%d, 3, v0" % vT1)
    a("v_lshl_add_u32 v%d, v%d, 3, v%d" % (vTRO, vT1, vTRO))
    a("v_lshrrev_b32 v%d, 3, v%d" % (vG2, vG16))
    a("v_lshlrev_b32 v%d, 4, v%d" % (vSW, vG16))
    a("v_mov_b32 v%d, 1" % vONE)
    a("v_mov_b32 v%d, %d" % (vNXA, L_NEXT))
    K = [0, 0]
    for h in range(2):
        for idx in range(8):
            K[h] |= path6(idx >> 1, 2 * h + (idx & 1)) << (4 * idx)
    a("v_lshlrev_b32 v%d, 2, v%d" % (vT1, vT2))
    a("s_mov_b32 s%d, 0x%x" % (sT0, K[0]))
    a("v_bfe_u32 v%d, s%d, v%d, 3" % (vWA0, sT0, vT1))
    a("s_mov_b32 s%d, 0x%x" % (sT0, K[1]))
    a("v_bfe_u32 v%d, s%d, v%d, 3" % (vWD, sT0, vT1))
    a("v_sub_u32 v%d, v%d, v%d" % (vWD, vWD, vWA0))
    a("v_lshlrev_b32 v%d, 8, v%d" % (vWA0, vWA0))
    a("v_lshl_add_u32 v%d, v%d, 5, v%d" % (vWA0, vT0, vWA0))
    a("v_add_u32 v%d, %d, v%d" % (vWA0, L_WR, vWA0))

    def drain(tag, nyoung):
        a("s_cmp_eq_u32 s%d, 0" % sFIRSTR)
        a("s_cbranch_scc1 K2_DR%s" % tag)
        a("s_mov_b32 s%d, 0" % sFIRSTR)
        a("s_cmp_ge_u32 s%d, 10" % sWAVE)
        a("s_cbranch_scc1 K2_DR%s" % tag)
        a("v_mov_b32 v%d, %d" % (vT0, L_PC))
        a("s_waitcnt vmcnt(%d)" % nyoung)
        a("s_mov_b64 exec, 1")
        a("ds_add_rtn_u32 v%d, v%d, v%d" % (vT1, vT0, vONE))
        a("s_mov_b64 exec, -1")
        a("s_waitcnt lgkmcnt(0)")
        a("v_readfirstlane_b32 s%d, v%d" % (sT0, vT1))
        stamp(a, cfg, 15)
        a("s_cmp_lg_u32 s%d, 9" % sT0)
        a("s_cbranch_scc1 K2_DR%s" % tag)
        publish(a, sWS, sTAG, FLAG_OFF + 0x4000, vLANE, vT0, sT1)
        a.label("K2_DR%s" % tag)
    a.label("K2_ROUND")
    a("v_and_b32 v%d, 63, v0" % vLANE)
    a("v_lshlrev_b32 v%d, 4, v0" % vT0)
    a("v_add_u32 v%d, %d, v%d" % (vT1, L_WIN, vT0))
    for i in range(4):
        a("v_mov_b32 v%d, 0" % (vG + i))
    a("ds_write_b128 v%d, %s" % (vT1, vr(vG, 4)))
    a("v_cmp_gt_u32 vcc, 400, v0")
    a("v_add_u32 v%d, %d, v%d" % (vT1, L_SRC, vT0))
    a("v_mov_b32 v%d, 0xffff0000" % vHI)
    a("v_cndmask_b32 v%d, 0, -1, vcc" % (vX + 1))
    a("v_cmp_eq_u32 vcc, 416, v0")
    a("v_mov_b32 v%d, v%d" % (vX + 2, vX + 1))
    a("v_mov_b32 v%d, v%d" % (vX + 3, vX + 1))
    a("v_cndmask_b32 v%d, v%d, %d, vcc" % (vX + 0, vX + 1, NW))
    a("v_cmp_gt_u32 vcc, 417, v0")
    a("s_and_saveexec_b64 %s, vcc" % sr(sSV, 2))
    a("s_cbranch_execz K2_INIT1")
    a("ds_write_b128 v%d, %s" % (vT1, vr(vX, 4)))
    a.label("K2_INIT1")
    a("s_mov_b64 exec, -1")
    a("s_cmp_eq_u32 s%d, 0" % sFIRSTR)
    a("s_cbranch_scc1 K2_LATER")
    a("s_cmp_eq_u32 s%d, 11" % sWAVE)
    a("s_cbranch_scc1 K2_NOPUB")
    a("s_cmp_lg_u32 s%d, 10" % sWAVE)
    a("s_cbranch_scc1 K2_DRAIN")
    a("v_mov_b32 v%d, %d" % (vT1, L_PC))
    poll(a, cfg, "A", sWS, sTAG, FLAG_OFF, vLANE, vM, sT0, (vT1, vONE))
    stamp(a, cfg, 14)
    a("s_lshl_b32 s%d, s%d, 2" % (sT0, sB))
    a("s_add_u32 s%d, s%d, 0x%x" % (sT0, sT0, TAB_OFF))
    a("v_lshlrev_b32 v%d, 12, v%d" % (vT0, vLANE))
    for k in range(4):
        a("buffer_load_dword v%d, v%d, %s, s%d offen offset:%d sc1" % (vTAB + k, vT0, sr(sWS, 4), sT0, k * 1024))
    if cfg.THR:
        a("ds_write_b32 v%d, v%d offset:12" % (vT1, vONE))
    a("v_lshlrev_b32 v%d, 4, v%d" % (vT0, vLANE))
    a("v_add_u32 v%d, %d, v%d" % (vT0, L_TAB, vT0))
    a("s_waitcnt vmcnt(0)")
    a("ds_write_b128 v%d, %s" % (vT0, vr(vTAB, 4)))
    a("s_branch K2_NOPUB")
    a.label("K2_DRAIN")
    a("s_load_dwordx4 s[36:39], s[0:1], 48")
    a("s_lshl_b32 s%d, s%d, 12" % (sT2, sWAVE))
    a("v_lshlrev_b32 v%d, 4, v%d" % (vT3, vLANE))
    a("v_add_u32 v%d, s%d, v%d" % (vPRE, sT2, vT3))
    a("s_waitcnt lgkmcnt(0)")
    a("s_cmp_ge_u32 s%d, 4" % sWAVE)
    a("s_cselect_b32 s36, s38, s36")
    a("s_cselect_b32 s37, s39, s37")
    a("s_cselect_b32 s%d, 0x4000, 0" % sT3)
    a("v_subrev_u32 v%d, s%d, v%d" % (vT3, sT3, vPRE))
    def wloads():
        for k in range(4):
            a("global_load_dwordx4 %s, v%d, s[36:37] offset:%d" % (vr(vF + 4 * k, 4), vT3, k * 1024))
    if cfg.WPOS == 0:
        wloads()
    a("s_cmp_ge_u32 s2, %d" % NCH)
    a("s_cbranch_scc1 K2_WST")
    a("v_mov_b32 v%d, %d" % (vT0, L_PC))
    a("v_lshlrev_b32 v%d, 4, v0" % vT2)
    a("s_mul_i32 s%d, s2, %d" % (sT1, CH * 16))
    if cfg.THR:
        a.label("K2_GSPIN")
        a("ds_read_b32 v%d, v%d offset:12" % (vT1, vT0))
        a("s_waitcnt lgkmcnt(0)")
        a("v_readfirstlane_b32 s%d, v%d" % (sT0, vT1))
        a("s_cmp_lg_u32 s%d, 0" % sT0)
        a("s_cbranch_scc1 K2_GO")
        a("s_sleep 1")
        a("s_branch K2_GSPIN")
    a.label("K2_GO")
    for k in range(4):
        a("buffer_store_dwordx4 %s, v%d, %s, s%d offen %s" % (vr(64 + 4 * k, 4), vT2, sr(sWS, 4), sT1, ["sc1", "sc0 sc1", "sc1 nt", "sc0 sc1 nt"][cfg.RECST]))
        if k < 3:
            a("s_add_u32 s%d, s%d, 10240" % (sT1, sT1))
        if cfg.STSPLIT >> k & 1:
            a("s_waitcnt vmcnt(0)")
    stamp(a, cfg, 14)
    a.label("K2_WST")
    drain("E", 0)
    if cfg.WPOS == 1:
        wloads()
        a("s_waitcnt vmcnt(0)")
    a("v_and_b32 v%d, 16, v0" % (vPRE + 1))
    a("v_lshlrev_b32 v%d, 1, v%d" % (vPRE + 1, vPRE + 1))
    a("v_xor_b32 v%d, v%d, v%d" % (vPRE, vPRE, vPRE + 1))
    a("v_xor_b32 v%d, 64, v%d" % (vPRE + 1, vPRE))
    for k in range(4):
        a("ds_write_b128 v%d, %s offset:%d" % (vPRE + (k & 1), vr(vF + 4 * k, 4), L_WST + k * 1024))
    a.label("K2_NOPUB")
    a("s_mov_b32 s%d, 0" % sFIRSTR)
    a("s_waitcnt lgkmcnt(0)")
    a("s_barrier")
    stamp(a, cfg, 1)
    a("s_cmp_lg_u32 s%d, 11" % sWAVE)
    a("s_cbranch_scc1 K2_SYNCED")
    poll(a, cfg, "B", sWS, sTAG, FLAG_OFF + 0x4000, vLANE, vM, sT0)
    a("v_mov_b32 v%d, %d" % (vT0, L_PC))
    a("ds_write_b32 v%d, v%d offset:8" % (vT0, vONE))
    stamp(a, cfg, 14)
    a("s_cmp_lg_u32 s2, 0")
    a("s_cbranch_scc1 K2_SYNCED")
    a("v_mov_b32 v%d, 0x%x" % (vT0, EPOCH_OFF))
    a("s_mov_b64 exec, 1")
    a("buffer_store_dword v%d, v%d, %s, 0 offen sc1" % (vM + 1, vT0, sr(sWS, 4)))
    a("s_mov_b64 exec, -1")
    a("s_branch K2_SYNCED")
    a.label("K2_LATER")
    a("s_waitcnt lgkmcnt(0)")
    a("s_barrier")
    a.label("K2_SYNCED")
    a("v_lshlrev_b32 v%d, 4, v%d" % (vT0, vLANE))
    a("v_add_u32 v%d, %d, v%d" % (vT0, L_TAB, vT0))
    a("ds_read_b128 %s, v%d" % (vr(vTAB, 4), vT0))
    a("s_waitcnt lgkmcnt(0)")
    a.label("K2_TABOK")
    for k in range(4):
        a("v_lshrrev_b32 v%d, 16, v%d" % (vLEN + k, vTAB + k))
    a("v_add_u32 v%d, v%d, v%d" % (vPRE + 2, vLEN + 0, vLEN + 1))
    a("v_add_u32 v%d, v%d, v%d" % (vPRE + 3, vPRE + 2, vLEN + 2))
    a("v_add_u32 v%d, v%d, v%d" % (vT0, vPRE + 3, vLEN + 3))
    a("v_mov_b32 v%d, v%d" % (vPRE, vT0))
    a("v_mul_u32_u24 v%d, %d, v%d" % (vT1, 4 * CH, vLANE))
    fill = []
    for k in range(4):
        fill.append("v_and_b32 v%d, 0xffff, v%d" % (vDEL + k, vTAB + k))
        fill.append("v_add3_u32 v%d, v%d, v%d, s%d" % (vDEL + k, vDEL + k, vT1, sCK + k) if k else "v_add_u32 v%d, v%d, v%d" % (vDEL, vDEL, vT1))
    fill += ["s_lshl_b32 s%d, s%d, 8" % (sT0, sWAVE), "s_add_u32 s%d, s%d, s%d" % (sT0, sT0, sROFF),
             "s_add_u32 s%d, s%d, s%d" % (sT1, sROFF, sQCAP), "s_lshl_b32 s%d, s%d, 10" % (sT2, sWAVE)]
    a("s_nop 0")
    for i, m in enumerate(scan):
        a("v_add_u32_dpp v%d, v%d, v%d %s bank_mask:0xf" % (vPRE, vPRE, vPRE, m))
        a(fill[2 * i]); a(fill[2 * i + 1])
    a("v_readlane_b32 s%d, v%d, 63" % (sTOT, vPRE))
    a("v_sub_u32 v%d, v%d, v%d" % (vPRE, vPRE, vT0))
    a("s_add_u32 s%d, s%d, %d" % (sT2, sT2, L_WIN))
    a("s_cmp_gt_u32 s%d, s%d" % (sTOT, sT1))
    a("s_cselect_b32 s%d, 1, 0" % sMORE)
    a("s_min_u32 s%d, s%d, s%d" % (sT1, sT1, sTOT))
    a("s_sub_i32 s%d, s%d, s%d" % (sT1, sT1, sT0))
    a("v_sub_u32 v%d, s%d, v%d" % (vREMC, sT1, vLANE))
    a("s_cmp_le_i32 s%d, 0" % sT1)
    a("s_cbranch_scc1 K2_NOKEY")
    a("v_add_u32 v%d, v%d, v%d" % (vPRE + 1, vPRE, vLEN + 0))
    a("v_add_u32 v%d, v%d, v%d" % (vPRE + 2, vPRE, vPRE + 2))
    a("v_add_u32 v%d, v%d, v%d" % (vPRE + 3, vPRE, vPRE + 3))
    for k in range(4):
        a("v_sub_u32 v%d, v%d, v%d" % (vDEL + k, vDEL + k, vPRE + k))
        a("v_subrev_u32 v%d, s%d, v%d" % (vPRE + k, sT0, vPRE + k))
        a("v_add_u32 v%d, v%d, v%d" % (vLEN + k, vLEN + k, vPRE + k))
        a("v_max_i32 v%d, 0, v%d" % (vT2, vPRE + k))
        a("v_lshl_add_u32 v%d, v%d, 2, s%d" % (vT2, vT2, sT2))
        a("v_cmpx_lt_i32 vcc, 0, v%d" % (vLEN + k))
        a("v_cmpx_gt_i32 vcc, 256, v%d" % (vPRE + k))
        a("ds_max_u32 v%d, v%d" % (vT2, vDEL + k))
        a("s_mov_b64 exec, -1")
    a("v_lshl_add_u32 v%d, v%d, 2, s%d" % (vT2, vLANE, sT2))
    a("ds_read2st64_b32 %s, v%d offset0:0 offset1:1" % (vr(vM, 2), vT2))
    a("ds_read2st64_b32 %s, v%d offset0:2 offset1:3" % (vr(vM + 2, 2), vT2))
    a("v_add_u32 v%d, s%d, v%d" % (vT3, sT0, vLANE))
    a("v_mov_b32 v%d, 0x8000000" % vT2)
    a("s_waitcnt lgkmcnt(0)")
    for m in scan:
        for i in range(4):
            a("v_max_u32_dpp v%d, v%d, v%d %s bank_mask:0xf" % (vM + i, vM + i, vM + i, m))
    a("v_readlane_b32 s%d, v%d, 63" % (sT0, vM + 0))
    a("v_readlane_b32 s%d, v%d, 63" % (sT1, vM + 1))
    a("v_readlane_b32 s%d, v%d, 63" % (sT2, vM + 2))
    a("v_add_u32 v%d, v%d, v%d" % (vM + 0, vM + 0, vT3))
    a("s_max_u32 s%d, s%d, s%d" % (sT1, sT1, sT0))
    a("s_max_u32 s%d, s%d, s%d" % (sT2, sT2, sT1))
    a("v_max_u32 v%d, s%d, v%d" % (vM + 1, sT0, vM + 1))
    a("v_max_u32 v%d, s%d, v%d" % (vM + 2, sT1, vM + 2))
    a("v_max_u32 v%d, s%d, v%d" % (vM + 3, sT2, vM + 3))
    for i in range(1, 4):
        a("v_add_u32 v%d, v%d, v%d" % (vM + i, vM + i, vT3))
    for i in range(4):
        a("v_cmpx_ge_i32 vcc, %d, v%d" % (64 * i, vREMC))
        a("v_mov_b32 v%d, v%d" % (vM + i, vT2))
        a("s_mov_b64 exec, -1")
        a("buffer_load_ubyte v%d, v%d, %s, s%d offen offset:%d" % (vKEY + i, vM + i, sr(sWS, 4), sKEYOFF, 64 * i) + " sc1")
    for i in range(4):
        a("v_lshlrev_b32 v%d, 4, v%d" % (vRA + i, vM + i))
    if not cfg.EARLYPUB: drain("K", 4)
    def wt_frags(tag):
        a("s_cmp_lg_u32 s%d, 0" % sROFF)
        a("s_cbranch_scc1 K2_NOWT%s" % tag)
        a("v_and_b32 v%d, 0x198, v%d" % (vT0, vTRO))
        a("v_lshl_add_u32 v%d, v%d, 6, v%d" % (vT0, vG16, vT0))
        a("v_bfe_u32 v%d, v0, 3, 2" % vT2)
        a("v_xor_b32 v%d, s%d, v%d" % (vT2, sNT, vT2))
        a("v_lshl_add_u32 v%d, v%d, 5, v%d" % (vT0, vT2, vT0))
        a("v_add_u32 v%d, %d, v%d" % (vT0, L_WST, vT0))
        for fi in range(10):
            if fi == 5:
                a("s_waitcnt lgkmcnt(4)")
            a("ds_read_b64_tr_b16 %s, v%d offset:%d" % (vr(vWT + 4 * fi, 2), vT0, fi * 4096))
            a("ds_read_b64_tr_b16 %s, v%d offset:%d" % (vr(vWT + 4 * fi + 2, 2), vT0, fi * 4096 + 512))
        a.label("K2_NOWT%s" % tag)
    if cfg.WTPOS == 1: wt_frags("K")
    def rec_loads():
        for i in range(4):
            a("buffer_load_dwordx4 %s, v%d, %s, 0 offen offset:%d sc1" % (vr(vREC + 4 * i, 4), vRA + i, sr(sWS, 4), 1024 * i))
    if cfg.B1M:
        a("s_barrier")
        rec_loads()
        a("s_waitcnt vmcnt(4)")
    else:
        a("v_mov_b32 v%d, %d" % (vT1, L_PC))
        a("ds_read_b32 v%d, v%d offset:8" % (vT2, vT1))
        a("s_waitcnt lgkmcnt(0)")
        a("v_readfirstlane_b32 s%d, v%d" % (sT3, vT2))
        a("s_cmp_eq_u32 s%d, 0" % sT3)
        a("s_cbranch_scc1 K2_NOTYET")
        rec_loads()
        a("s_waitcnt vmcnt(4)")
        a("s_branch K2_LDDONE")
        a.label("K2_NOTYET")
        a("s_waitcnt vmcnt(0)")
    a.label("K2_LDDONE")
    stamp(a, cfg, 3)
    a("v_mov_b32 v%d, %d" % (vT3, L_HIST))
    for it in range(ITF):
        a("v_cmpx_lt_i32 vcc, %d, v%d" % (64 * it, vREMC))
        a("s_cbranch_execz K2_RKDONE")
        a("v_lshlrev_b32 v%d, 2, v%d" % (vKEY + it, vKEY + it))
        a("v_add_u32 v%d, v%d, v%d" % (vT2, vT3, vKEY + it))
        a("ds_add_rtn_u32 v%d, v%d, v%d" % (vRANK + it, vT2, vONE))
    a.label("K2_RKDONE")
    a("s_mov_b64 exec, -1")
    if not cfg.B1M:
        a("s_cmp_lg_u32 s%d, 0" % sT3)
        a("s_cbranch_scc1 K2_KEYED")
        a.label("K2_RSPIN")
        a("s_sleep 1")
        a("ds_read_b32 v%d, v%d offset:8" % (vT2, vT1))
        a("s_waitcnt lgkmcnt(0)")
        a("v_readfirstlane_b32 s%d, v%d" % (sT3, vT2))
        a("s_cmp_eq_u32 s%d, 0" % sT3)
        a("s_cbranch_scc1 K2_RSPIN")
        rec_loads()
    a("s_branch K2_KEYED")
    a.label("K2_NOKEY")
    if cfg.B1M:
        a("s_barrier")
    if cfg.WTPOS == 1: wt_frags("N")
    if not cfg.EARLYPUB: drain("N", 0)
    a.label("K2_KEYED")
    if cfg.WTPOS == 0: wt_frags("K")
    a("v_lshlrev_b32 v%d, 2, v%d" % (vT0, vLANE))
    a("v_add_u32 v%d, %d, v%d" % (vT0, L_HIST, vT0))
    a("v_cmp_gt_u32 vcc, s%d, v%d" % (sNN, vLANE))
    a("s_waitcnt lgkmcnt(0)")
    a("s_barrier")
    stamp(a, cfg, 4)
    a("ds_read_b32 v%d, v%d" % (vCNT, vT0))
    a("s_waitcnt lgkmcnt(0)")
    a("v_add_u32 v%d, 8, v%d" % (vT0, vCNT))
    a("v_and_b32 v%d, -8, v%d" % (vT0, vT0))
    a("v_max_u32 v%d, 32, v%d" % (vT0, vT0))
    a("v_cndmask_b32 v%d, 0, v%d, vcc" % (vT0, vT0))
    a("v_mov_b32 v%d, v%d" % (vINFO, vT0))
    wave_scan(a, vINFO)
    a("s_nop 0")
    a("v_readlane_b32 s%d, v%d, 63" % (sT0, vINFO))
    a("v_sub_u32 v%d, v%d, v%d" % (vINFO, vINFO, vT0))
    a("s_cmp_le_u32 s%d, %d" % (sT0, 2000 if cfg.FORCE_SLOW == 2 else GRCAP))
    a("s_cbranch_scc1 K2_FITS")
    if cfg.FORCE_SLOW == 2:
        a("s_cmp_eq_u32 s%d, %d" % (sQCAP, QSAFE))
        a("s_cbranch_scc1 K2_FITS")
    a("s_movk_i32 s%d, %d" % (sQCAP, QSAFE))
    a("s_waitcnt vmcnt(0)")
    a("s_barrier")
    a("s_branch K2_ROUND")
    a.label("K2_FITS")
    for it in range(ITF):
        a("ds_bpermute_b32 v%d, v%d, v%d" % (vKEY + it, vKEY + it, vINFO))
    a("s_mov_b32 s%d, s%d" % (sITEM, sWAVE))
    a("s_mov_b32 s%d, 1" % xVALID)
    a("s_mov_b32 s%d, 64" % cREM)
    a("s_mov_b32 s%d, 1" % cFIRST)
    a("v_and_b32 v%d, 15, v0" % vC16)
    a("v_lshlrev_b32 v%d, 4, v%d" % (vC16, vC16))
    for i in range(1, 8):
        a("v_mov_b32 v%d, v%d" % (vAD + 2 * i + 1, vC16))
    for i in (1, 3, 5, 7):
        for q in range(4):
            a("v_mov_b32 v%d, 0" % (vF + 4 * i + q))

    def al():
        if cfg.ALIGN == 1:
            a.raw(".p2align 3")
        elif cfg.ALIGN == 2:
            a.raw(".p2align 3")
            a("s_nop 0")
    def new_item():
        a("s_cmp_ge_u32 s%d, s%d" % (sITEM, sNN))
        a("s_cselect_b32 s%d, 256, 0" % xH256)
        a("s_cselect_b32 s%d, s%d, 0" % (sT0, sNN))
        a("s_sub_u32 s%d, s%d, s%d" % (xN, sITEM, sT0))
        a("v_readlane_b32 s%d, v%d, s%d" % (sT1, vINFO, xN))
        a("v_readlane_b32 s%d, v%d, s%d" % (xREM, vCNT, xN))
        a("s_lshl_b32 s%d, s%d, 10" % (sT0, xN))
        a("s_add_u32 s%d, s%d, %d" % (sT0, sT0, L_S0))
        a("s_lshl_b32 s%d, s%d, 5" % (xGA, sT1))
        a("s_add_u32 s%d, s%d, s%d" % (xLIM, sT1, xREM))
        a("s_lshl_b32 s%d, s%d, 5" % (xLIM, xLIM))
        a("s_lshl_b32 s%d, s%d, 1" % (xSA, sT1))
        a("s_add_u32 s%d, s%d, %d" % (xSA, xSA, L_SRC))
        a("s_cmp_eq_u32 s%d, 0" % xH256)
        a("s_cselect_b32 s%d, s%d, s%d" % (xSAD, sT0, xGA))
        a("s_xor_b32 s%d, s%d, s%d" % (xH256, xH256, sFLIP))
        a("s_mov_b32 s%d, 1" % xFIRST)
    def read_src():
        a("v_add_u32 v%d, s%d, v%d" % (vAD + 14, xSA, vG2))
        for i in range(8):
            a("ds_read_u16 v%d, v%d offset:%d" % (vAD + 2 * i, vAD + 14, 8 * i))
        if cfg.ABL & 32:
            a("s_waitcnt lgkmcnt(0)")
            for i in range(8):
                a("v_and_b32 v%d, 0x%x, v%d" % (vAD + 2 * i, cfg.AMASK, vAD + 2 * i))
    def read_g():
        a("v_add_u32 v%d, s%d, v%d" % (vAD + 0, xGA, vTRO))
        a("v_add_u32 v%d, 0x200, v%d" % (vAD + 2, vAD + 0))
        a("v_min_u32 v%d, s%d, v%d" % (vAD + 0, xLIM, vAD + 0))
        a("v_min_u32 v%d, s%d, v%d" % (vAD + 2, xLIM, vAD + 2))
        a("ds_read_b64_tr_b16 %s, v%d" % (vr(vG, 2), vAD + 0))
        a("ds_read_b64_tr_b16 %s, v%d" % (vr(vG + 2, 2), vAD + 2))
    def gload(i):
        a("buffer_load_dwordx4 %s, %s, %s, s%d idxen offen" % (vr(vF + 4 * i, 4), vr(vAD + 2 * i, 2), sr(sX, 4), xH256))
    def mfmas(tag):
        if cfg.ABL & 2:
            return
        a("s_cmp_eq_u32 s%d, 0" % cFIRST)
        a("s_cbranch_scc1 K2_MFACC%s" % tag)
        al()
        for j in range(8):
            a("v_mfma_f32_16x16x32_bf16 %s, %s, %s, 0" % (vr(vACC + 4 * j, 4), vr(vG, 4), vr(vPB + 4 * j, 4)))
        a("s_branch K2_MFDONE%s" % tag)
        al()
        a.label("K2_MFACC%s" % tag)
        for j in range(8):
            a("v_mfma_f32_16x16x32_bf16 %s, %s, %s, %s" % (vr(vACC + 4 * j, 4), vr(vG, 4), vr(vPB + 4 * j, 4), vr(vACC + 4 * j, 4)))
        a.label("K2_MFDONE%s" % tag)
    def epi_reads():
        a("v_mad_i32_i24 v%d, v%d, s%d, v%d" % (vAD + 4, vWD, cH256, vWA0))
        a("ds_read_b32 v%d, v%d offset:8" % (vAD + 6, vNXA)); a("ds_read_b32 v%d, v%d offset:12" % (vAD + 8, vNXA))
        for d in range(4):
            if cfg.ABL & 8: break
            a("ds_read_b128 %s, v%d offset:%d" % (vr(vPB + 8 * d, 4), vAD + 4, d * 1536))
            a("ds_read_b128 %s, v%d offset:%d" % (vr(vPB + 8 * d + 4, 4), vAD + 4, d * 1536 + 16))
    def epi(nyounger, tag):
        a("s_and_b32 s%d, s%d, 15" % (sT0, cN))
        a("s_lshl_b32 s%d, s%d, 4" % (sT0, sT0))
        a("v_xor_b32 v%d, s%d, v%d" % (vAD + 10, sT0, vC16))
        a("v_add3_u32 v%d, v%d, v%d, s%d" % (vAD + 10, vAD + 10, vSW, cSAD))
        a("s_waitcnt lgkmcnt(%d)" % nyounger)
        for d in range(4):
            if cfg.ABL & 8: break
            for j in range(8):
                op = "v_mul_f32" if d == 0 else "v_fmac_f32"
                a("%s v%d, v%d, v%d" % (op, vACC + 4 * j, vACC + 4 * j + d, vPB + 8 * d + j))
        for q in range(4):
            a("v_cvt_pk_bf16_f32 v%d, v%d, v%d" % (vPB + q, vACC + 8 * q, vACC + 8 * q + 4))
        a("s_cmp_eq_u32 s%d, s%d" % (cH256, sFLIP))
        a("s_cbranch_scc1 K2_EH0%s" % tag)
        a("s_mov_b32 s%d, 0x100000" % sT1)
        a.label("K2_EH1%s" % tag)
        a("v_readfirstlane_b32 s%d, v%d" % (sT2, vAD + 6))
        a("v_readfirstlane_b32 s%d, v%d" % (sT3, vAD + 8))
        a("s_bitcmp1_b64 %s, s%d" % (sr(sT2, 2), cN))
        a("s_cbranch_scc1 K2_EW1%s" % tag)
        a("s_sub_u32 s%d, s%d, 1" % (sT1, sT1))
        a("s_cbranch_scc1 K2_EW1%s" % tag)
        a("s_sleep 1")
        a("ds_read_b32 v%d, v%d offset:8" % (vAD + 6, vNXA)); a("ds_read_b32 v%d, v%d offset:12" % (vAD + 8, vNXA))
        a("s_waitcnt lgkmcnt(0)")
        a("s_branch K2_EH1%s" % tag)
        a.label("K2_EH0%s" % tag)
        a("s_lshl_b64 %s, 1, s%d" % (sr(sT2, 2), cN))
        a("ds_write_b128 v%d, %s" % (vAD + 10, vr(vPB, 4)))
        a("v_mov_b32 v%d, s%d" % (vPB + 4, sT2))
        a("v_mov_b32 v%d, s%d" % (vPB + 5, sT3))
        a("s_mov_b64 exec, 1")
        a("ds_or_b64 v%d, %s offset:8" % (vNXA, vr(vPB + 4, 2)))
        a("s_mov_b64 exec, -1")
        a("s_branch K2_EDONE%s" % tag)
        a.label("K2_EW1%s" % tag)
        a("ds_write_b128 v%d, %s" % (vAD + 10, vr(vPB, 4)))
        a.label("K2_EDONE%s" % tag)
    def perm_block(p, align=True):
        if align: al()
        for j in range(8):
            if cfg.ABL & 1: break
            q, sel = j >> 1, (sSELHI if j & 1 else sSELLO)
            a("v_perm_b32 v%d, v%d, v%d, s%d" % (vPB + 4 * j + p, vF + 4 * (2 * p + 1) + q, vF + 4 * (2 * p) + q, sel))

    new_item()
    if cfg.WTPOS == 2: wt_frags("K")
    a("s_mov_b32 s%d, %d" % (sT3, L_SRC))
    a("s_waitcnt lgkmcnt(0)")
    for it in range(ITF):
        k, p, r = vKEY + it, vRANK + it, vREC + 4 * it
        a("v_cmpx_lt_i32 vcc, %d, v%d" % (64 * it, vREMC))
        a("s_cbranch_execz K2_WRDONE")
        a("v_add_u32 v%d, v%d, v%d" % (k, k, p))
        a("v_lshl_add_u32 v%d, v%d, 1, s%d" % (p, k, sT3))
        a("v_lshlrev_b32 v%d, 5, v%d" % (k, k))
        a("s_waitcnt vmcnt(%d)" % (3 - it))
        a("ds_write_b16 v%d, v%d" % (p, r + 2))
    a.label("K2_WRDONE")
    a("s_mov_b64 exec, -1")
    e, y, pr, q2 = vX, vX + 4, vX + 8, vX + 12
    def expand(its, done):
        for it in its:
            k, r = vKEY + it, vREC + 4 * it
            a("v_cmpx_lt_i32 vcc, %d, v%d" % (64 * it, vREMC))
            a("s_cbranch_execz %s" % done)
            a("v_lshlrev_b32 v%d, 16, v%d" % (e + 0, r + 0))
            a("v_and_b32 v%d, v%d, v%d" % (e + 1, vHI, r + 0))
            a("v_lshlrev_b32 v%d, 16, v%d" % (e + 2, r + 1))
            a("v_and_b32 v%d, v%d, v%d" % (e + 3, vHI, r + 1))
            a("v_and_b32 v%d, v%d, v%d" % (y + 0, vHI, r + 2))
            a("v_lshlrev_b32 v%d, 16, v%d" % (y + 1, r + 3))
            a("v_and_b32 v%d, v%d, v%d" % (y + 2, vHI, r + 3))
            qq = q2 + 4 * (it & 1)
            for j, dst in ((0, r + 2), (1, qq), (2, qq + 2)):
                for d in range(4):
                    a("v_mul_f32 v%d, v%d, v%d" % (pr + d, e + d, y + j))
                a("v_cvt_pk_bf16_f32 v%d, v%d, v%d" % (dst, pr, pr + 1))
                a("v_cvt_pk_bf16_f32 v%d, v%d, v%d" % (dst + 1, pr + 2, pr + 3))
                if j == 0:
                    a("ds_write_b128 v%d, %s" % (k, vr(r, 4)))
            a("ds_write_b128 v%d, %s offset:16" % (k, vr(qq, 4)))
        a.label(done)
        a("s_mov_b64 exec, -1")
    if cfg.XPRE:
        a("s_mov_b64 exec, 1")
        a("ds_add_u32 v%d, v%d offset:4" % (vNXA, vONE))
        a("s_mov_b64 exec, -1")
        expand(range(cfg.XPRE), "K2_EXD0")
        a.label("K2_XSPIN")
        a("ds_read_b32 v%d, v%d offset:4" % (vT0, vNXA))
        a("s_waitcnt vmcnt(0) lgkmcnt(0)")
        a("v_readfirstlane_b32 s%d, v%d" % (sT0, vT0))
        a("s_cmp_ge_u32 s%d, %d" % (sT0, NW))
        a("s_cbranch_scc1 K2_XDONE")
        a("s_sleep 1")
        a("s_branch K2_XSPIN")
        a.label("K2_XDONE")
    else:
        a("s_waitcnt vmcnt(0) lgkmcnt(0)")
        a("s_barrier")
    stamp(a, cfg, 5)
    if cfg.TS:
        a("s_memtime %s" % sr(TSB + 20, 2))
        a("s_mov_b32 s%d, 0" % (TSB + 24))
    read_src()
    a("s_waitcnt lgkmcnt(0)")
    for i in range(cfg.PRE):
        a("s_cmp_le_i32 s%d, %d" % (xREM, 4 * i))
        a("s_cbranch_scc1 K2_PISSUED")
        gload(i)
    a.label("K2_PISSUED")
    a("s_cmp_lg_u32 s%d, 11" % sWAVE)
    a("s_cbranch_scc1 K2_NOZR")
    a("v_add_lshl_u32 v%d, v%d, v%d, 5" % (vT0, vINFO, vCNT))
    a("ds_write_b128 v%d, %s" % (vT0, vr(vG, 4)))
    a("ds_write_b128 v%d, %s offset:16" % (vT0, vr(vG, 4)))
    a.label("K2_NOZR")
    expand(range(cfg.XPRE, ITF), "K2_EXDONE")
    a("s_waitcnt lgkmcnt(0)")
    a("s_barrier")
    stamp(a, cfg, 2)
    for i in range(cfg.PRE, 8):
        a("s_cmp_le_i32 s%d, %d" % (xREM, 4 * i))
        a("s_cbranch_scc1 K2_ISSUED")
        gload(i)
    a("s_branch K2_ISSUED")

    a.label("K2_TOP")
    a("s_cmp_le_i32 s%d, 28" % cREM)
    a("s_cbranch_scc1 K2_OLD")
    a("s_cmp_eq_u32 s%d, 0" % xVALID)
    a("s_cbranch_scc1 K2_OLD")
    for p in range(4):
        a("s_waitcnt vmcnt(6)")
        perm_block(p)
        if p == 0:
            a("s_waitcnt lgkmcnt(0)")
        for i in (2 * p, 2 * p + 1):
            a("s_cmp_le_i32 s%d, %d" % (xREM, 4 * i))
            a("s_cbranch_scc1 K2_X%d" % i)
            gload(i)
    a.label("K2_ISSUED")
    if cfg.TS:
        a("s_add_u32 s%d, s%d, 1" % (TSB + 24, TSB + 24))
    a("s_mov_b64 %s, %s" % (sr(pN, 2), sr(xN, 2)))
    a("s_mov_b64 %s, %s" % (sr(pFIRST, 2), sr(xFIRST, 2)))
    a("s_mov_b32 s%d, s%d" % (pSAD, xSAD))
    a("s_cmp_gt_i32 s%d, 32" % xREM)
    a("s_cbranch_scc1 K2_NOCLAIM")
    a("s_mov_b64 exec, 1")
    a("ds_add_rtn_u32 v%d, v%d, v%d" % (vNEXT, vNXA, vONE))
    a("s_mov_b64 exec, -1")
    a.label("K2_NOCLAIM")
    mfmas("")
    a("s_waitcnt lgkmcnt(0)")
    a("s_cmp_gt_i32 s%d, 32" % cREM)
    a("s_cbranch_scc1 K2_NOER")
    epi_reads()
    a.label("K2_NOER")
    read_g()
    a("s_cmp_gt_i32 s%d, 32" % xREM)
    a("s_cbranch_scc0 K2_NEWITEM")
    a("s_sub_i32 s%d, s%d, 32" % (xREM, xREM))
    a("s_add_u32 s%d, s%d, 1024" % (xGA, xGA))
    a("s_add_u32 s%d, s%d, 64" % (xSA, xSA))
    a("s_mov_b32 s%d, 0" % xFIRST)
    a.label("K2_HAVE")
    a("s_cmp_gt_i32 s%d, 32" % cREM)
    a("s_cbranch_scc1 K2_NOEPI")
    epi(2, "")
    a.label("K2_NOEPI")
    read_src()
    a("s_mov_b64 %s, %s" % (sr(cN, 2), sr(pN, 2)))
    a("s_mov_b64 %s, %s" % (sr(cFIRST, 2), sr(pFIRST, 2)))
    a("s_mov_b32 s%d, s%d" % (cSAD, pSAD))
    a("s_branch K2_TOP")
    a.label("K2_NEWITEM")
    a("v_readfirstlane_b32 s%d, v%d" % (sITEM, vNEXT))
    a("s_cmp_lt_u32 s%d, s%d" % (sITEM, sNN2))
    a("s_cselect_b32 s%d, 1, 0" % xVALID)
    a("s_cbranch_scc0 K2_HAVE")
    new_item()
    a("s_branch K2_HAVE")
    for i in range(8):
        a.label("K2_X%d" % i)
        if i & 1:
            for q in range(4):
                a("v_mov_b32 v%d, 0" % (vF + 4 * i + q))
        if i >= 6:
            a("s_branch K2_ISSUED")
        else:
            a("s_waitcnt vmcnt(%d)" % i)
            a("s_branch K2_C%d" % (i // 2 + 1))
    for p in range(1, 4):
        if p == 1: al()
        a.label("K2_C%d" % p)
        perm_block(p, False)
    a("s_branch K2_ISSUED")
    a.label("K2_OLD")
    a("s_waitcnt vmcnt(0) lgkmcnt(0)")
    for p in range(4):
        a("s_cmp_le_i32 s%d, %d" % (cREM, 8 * p))
        a("s_cbranch_scc1 K2_PZ%d" % p)
        perm_block(p)
    a.label("K2_ISSUE")
    a("s_cmp_eq_u32 s%d, 0" % xVALID)
    a("s_cbranch_scc1 K2_TAIL")
    for i in range(8):
        a("s_cmp_le_i32 s%d, %d" % (xREM, 4 * i))
        a("s_cbranch_scc1 %s" % ("K2_Z%d" % i if i & 1 else "K2_ISSUED"))
        gload(i)
    a("s_branch K2_ISSUED")
    for i in (1, 3, 5, 7):
        a.label("K2_Z%d" % i)
        for q in range(4):
            a("v_mov_b32 v%d, 0" % (vF + 4 * i + q))
        a("s_branch K2_ISSUED")
    for p in range(4):
        a.label("K2_PZ%d" % p)
        for j in range(8):
            a("v_mov_b32 v%d, 0" % (vPB + 4 * j + p))
    a("s_branch K2_ISSUE")
    a.label("K2_TAIL")
    vOA = vF
    def spill_addr(v):
        a("v_lshlrev_b32 v%d, 4, v0" % v)
        a("s_mul_i32 s%d, s2, %d" % (sT0, 768 * 64))
        a("s_add_u32 s%d, s%d, 0x%x" % (sT0, sT0, SPILL_OFF))
    a("s_cmp_lg_u32 s%d, 0" % sROFF)
    a("s_cbranch_scc1 K2_OALD")
    for i in range(16):
        a("v_mov_b32 v%d, 0" % (vOA + i))
    a("s_branch K2_OAOK")
    a.label("K2_OALD")
    spill_addr(vAD)
    for q in range(4):
        a("buffer_load_dwordx4 %s, v%d, %s, s%d offen sc1" % (vr(vOA + 4 * q, 4), vAD, sr(sWS, 4), sT0))
        a("s_add_u32 s%d, s%d, %d" % (sT0, sT0, 768 * 16))
    a.label("K2_OAOK")
    mfmas("T")
    epi_reads()
    vO0, vO1 = vF + 27, vF + 28
    a("s_mul_i32 s%d, s%d, %d" % (sT0, sMT, 16 * 528))
    a("s_lshl_b32 s%d, s%d, 5" % (sT1, sNT))
    a("s_add_u32 s%d, s%d, s%d" % (sT0, sT0, sT1))
    a("s_add_u32 s%d, s%d, %d" % (sT0, sT0, L_OUT))
    a("v_mul_u32_u24 v%d, 33, v%d" % (vO0, vC16))
    a("v_lshrrev_b32 v%d, 1, v%d" % ((vF + 24), vG16))
    a("v_add3_u32 v%d, v%d, v%d, s%d" % (vO0, vO0, (vF + 24), sT0))
    a("v_lshrrev_b32 v%d, 5, v0" % (vF + 24))
    a("v_and_b32 v%d, 31, v0" % (vF + 25))
    a("v_mul_u32_u24 v%d, 528, v%d" % (vO1, (vF + 24)))
    a("v_lshl_add_u32 v%d, v%d, 4, v%d" % (vO1, (vF + 25), vO1))
    a("v_add_u32 v%d, %d, v%d" % (vO1, L_OUT, vO1))
    a("v_lshlrev_b32 v%d, 4, v0" % (vO1 + 1))
    a("v_add_u32 v%d, %d, v%d" % (vO1 + 2, 768 * 16, vO1 + 1))
    epi(0, "T")

    stamp(a, cfg, 6)
    vB = vPB
    vA0, vA1 = vF + 16, vF + 20
    vU0, vU1, vU2 = vG, vG + 1, vG + 2
    a("ds_read_b64 %s, v%d offset:8" % (vr(vF + 24, 2), vNXA))
    if cfg.LATEK < 12:
        a("s_mov_b64 exec, 1")
        a("ds_add_rtn_u32 v%d, v%d, v%d offset:4" % (vF + 26, vNXA, vONE))
        a("s_mov_b64 exec, -1")
    a("s_lshl_b32 s%d, s%d, 6" % (sT0, sMT))
    a("v_lshrrev_b32 v%d, 2, v%d" % (vU0, vC16))
    a("v_add_u32 v%d, s%d, v%d" % (vU0, sT0, vU0))
    a("ds_bpermute_b32 v%d, v%d, v%d" % (vU2, vU0, vINFO))
    a("v_xor_b32 v%d, v%d, v%d" % (vU1, vG16, vC16))
    a("v_lshlrev_b32 v%d, 8, v%d" % (vU0, vU0))
    a("v_add_u32 v%d, %d, v%d" % (vU0, L_S0, vU0))
    a("s_waitcnt lgkmcnt(0)")
    a("v_lshlrev_b32 v%d, 5, v%d" % (vU2, vU2))
    a("v_readfirstlane_b32 s%d, v%d" % (sT2, vF + 24))
    a("v_readfirstlane_b32 s%d, v%d" % (sT3, vF + 25))
    a("s_cmp_eq_u32 s%d, 0" % sFLIP)
    a("s_cbranch_scc1 K2_NOSWAP")
    a("v_swap_b32 v%d, v%d" % (vU0, vU2))
    a.label("K2_NOSWAP")
    for cmb in range(4):
        a("v_xor_b32 v%d, %d, v%d" % (vA1 + cmb, cmb * 64, vU1))
        a("v_add_u32 v%d, v%d, v%d" % (vA0 + cmb, vA1 + cmb, vU0))
        a("v_add_u32 v%d, v%d, v%d" % (vA1 + cmb, vA1 + cmb, vU2))
    def s2_half(h, first):
        seq = []
        for o in range(4):
            for jp in range(4):
                if ((jp ^ o) >> 1) == h:
                    for ch in range(2):
                        seq.append((o, jp, ch))
        if cfg.S2ORD:
            seq = [seq[4 * o + q] for q in range(4) for o in range(4)]
        for idx, (o, jp, ch) in enumerate(seq):
            l = jp ^ o
            if idx == 15:
                a("s_waitcnt lgkmcnt(14)")
            a("ds_read_b128 %s, v%d offset:%d" % (vr(vB + 4 * idx, 4), (vA1 if h else vA0) + (l & 1) * 2 + ch, jp * 256))
        if first:
            a("s_waitcnt vmcnt(0)")
        for idx, (o, jp, ch) in enumerate(seq):
            a("s_waitcnt lgkmcnt(%d)" % (15 - idx))
            a("v_mfma_f32_16x16x32_bf16 %s, %s, %s, %s" % (vr(vOA + 4 * o, 4), vr(vWT + 8 * wmat(o, jp) + 4 * ch, 4), vr(vB + 4 * idx, 4), vr(vOA + 4 * o, 4)))
    sPH, sSTEP, sBAR = xGA, xLIM, xSA
    a("s_bcnt1_i32_b64 s%d, %s" % (sT1, sr(sT2, 2)))
    a("s_mov_b32 s%d, s%d" % (sPH, sFLIP))
    a("s_mov_b32 s%d, 0" % sSTEP)
    a("s_mov_b32 s%d, 0" % sBAR)
    if cfg.LATEK < 12:
        a("v_readfirstlane_b32 s%d, v%d" % (sT0, vF + 26))
        a("s_cmp_ge_u32 s%d, %d" % (sT0, cfg.LATEK))
        a("s_cselect_b32 s%d, 0, s%d" % (sT1, sT1))
    a("s_cmp_eq_u32 s%d, s%d" % (sT1, sNN))
    a("s_cbranch_scc1 K2_S2RUN")
    a("s_barrier")
    stamp(a, cfg, 7)
    if cfg.TS:
        a("s_memtime %s" % sr(TSB + 22, 2))
    a("s_mov_b32 s%d, 1" % sBAR)
    a.label("K2_S2RUN")
    a("s_cmp_lg_u32 s%d, 0" % sPH)
    a("s_cbranch_scc1 K2_S2H1")
    s2_half(0, True)
    a("s_branch K2_S2AFT")
    a.label("K2_S2H1")
    s2_half(1, True)
    a.label("K2_S2AFT")
    a("s_cmp_lg_u32 s%d, 0" % sSTEP)
    a("s_cbranch_scc1 K2_S2END")
    a("s_mov_b32 s%d, 1" % sSTEP)
    a("s_xor_b32 s%d, s%d, 256" % (sPH, sPH))
    a("s_cmp_lg_u32 s%d, 0" % sBAR)
    a("s_cbranch_scc1 K2_S2RUN")
    a("s_barrier")
    stamp(a, cfg, 7)
    if cfg.TS:
        a("s_memtime %s" % sr(TSB + 22, 2))
    a("s_branch K2_S2RUN")
    a.label("K2_S2END")
    a("s_cmp_eq_u32 s%d, 0" % sMORE)
    a("s_cbranch_scc1 K2_FINAL")
    a("s_add_u32 s%d, s%d, s%d" % (sROFF, sROFF, sQCAP))
    spill_addr(vAD)
    a("s_nop 7")
    for q in range(4):
        a("buffer_store_dwordx4 %s, v%d, %s, s%d offen sc1" % (vr(vOA + 4 * q, 4), vAD, sr(sWS, 4), sT0))
        a("s_add_u32 s%d, s%d, %d" % (sT0, sT0, 768 * 16))
    a("s_waitcnt vmcnt(0)")
    a("s_barrier")
    a("s_branch K2_ROUND")
    a.label("K2_FINAL")
    if cfg.S2ORD:
        a("s_nop 7")
    a("s_mov_b32 s%d, 0xbfb8aa3b" % sT0)
    vE = vPB
    for r in range(4):
        a("v_mul_f32 v%d, s%d, v%d" % (vE + r, sT0, vOA + r))
    for r in range(4):
        a("v_exp_f32 v%d, v%d" % (vE + r, vE + r))
    for r in range(4):
        a("v_add_f32 v%d, 1.0, v%d" % (vE + r, vE + r))
    for r in range(4):
        a("v_rcp_f32 v%d, v%d" % (vE + r, vE + r))
    a("v_cvt_pk_bf16_f32 v%d, v%d, v%d" % (vE + 8, vOA + 0, vOA + 1))
    a("v_cvt_pk_bf16_f32 v%d, v%d, v%d" % (vE + 9, vOA + 2, vOA + 3))
    for o in range(1, 4):
        for r in range(4):
            a("v_mul_f32 v%d, v%d, v%d" % (vOA + 4 * o + r, vOA + 4 * o + r, vE + r))
        a("v_cvt_pk_bf16_f32 v%d, v%d, v%d" % (vE + 8 + 2 * o, vOA + 4 * o, vOA + 4 * o + 1))
        a("v_cvt_pk_bf16_f32 v%d, v%d, v%d" % (vE + 9 + 2 * o, vOA + 4 * o + 2, vOA + 4 * o + 3))
    for o in range(4):
        a("ds_write_b64 v%d, %s offset:%d" % (vO0, vr(vE + 8 + 2 * o, 2), o * 128))
    a("s_lshl_b32 s%d, s%d, 9" % (sT0, sNODE0))
    a("s_add_u32 s%d, s%d, s%d" % (sOUT, sOUT, sT0))
    a("s_addc_u32 s%d, s%d, 0" % (sOUT + 1, sOUT + 1))
    a("s_lshl_b32 s%d, s%d, 9" % (sOUT + 2, sNN))
    a("s_waitcnt lgkmcnt(0)")
    a("s_barrier")
    ost = ["", " sc1", " nt", " sc0 sc1"][cfg.OUT_ST]
    a("ds_read_b128 %s, v%d" % (vr(vE, 4), vO1))
    a("s_cmp_ge_u32 s%d, 8" % sWAVE)
    a("s_cbranch_scc1 K2_ST1")
    a("ds_read_b128 %s, v%d offset:%d" % (vr(vE + 4, 4), vO1, 24 * 528))
    a("s_waitcnt lgkmcnt(0)")
    a("buffer_store_dwordx4 %s, v%d, %s, 0 offen" % (vr(vE + 4, 4), vO1 + 2, sr(sOUT, 4)) + ost)
    a.label("K2_ST1")
    a("s_waitcnt lgkmcnt(0)")
    a("buffer_store_dwordx4 %s, v%d, %s, 0 offen" % (vr(vE, 4), vO1 + 1, sr(sOUT, 4)) + ost)
    if cfg.TS:
        stamp(a, cfg, 8)
        a("s_waitcnt vmcnt(0)")
        stamp(a, cfg, 9)
        stamp_flush(a, cfg, 1, 16, sWS, 16, 17, sT0)
    a.label("K2_END")
    a("s_endpgm")
    a.label("CODE_END")
    return lds

def kd(name, vgpr, sgpr):
    acc = (vgpr + 3) // 4 * 4
    return """.p2align 6
.amdhsa_kernel %s
  .amdhsa_next_free_vgpr %d
  .amdhsa_next_free_sgpr %d
  .amdhsa_accum_offset %d
  .amdhsa_group_segment_fixed_size 0
  .amdhsa_kernarg_size 96
  .amdhsa_user_sgpr_count 2
  .amdhsa_user_sgpr_kernarg_segment_ptr 1
  .amdhsa_system_sgpr_workgroup_id_x 1
  .amdhsa_float_denorm_mode_32 3
.end_amdhsa_kernel
""" % (name, vgpr, sgpr, acc)

def build(cfg):
    a = Asm()
    lds2 = gen_k2(a, cfg)
    hdr = open("cdna_kernels/%s.s.ref" % NAME).read().split("\n")
    head = [l for l in hdr if l.startswith(";") and "@launch" not in l]
    out = "\n".join(head) + "\n"
    out += "; @launch grid=(%d,1,1) block=(768,1,1) lds=%d\n" % (NB, lds2)
    out += '.amdgcn_target "amdgcn-amd-amdhsa--gfx950"\n.text\n'
    out += a.text()
    out += '.section .rodata,"a"\n'
    out += kd(NAME + "_kernel", 168, 100 if cfg.TS else 64)
    return out

if __name__ == "__main__":
    cfg = Cfg()
    outp = "cdna_kernels/%s.s" % NAME
    for arg in sys.argv[1:]:
        if "=" in arg:
            k, v = arg.split("=")
            assert hasattr(cfg, k), k
            setattr(cfg, k, int(v))
        else:
            outp = arg
    open(outp, "w").write(build(cfg))
    print("wrote", outp)
```
